```python
import torch

def _softmax(x, axis=-1):
    return torch.softmax(x, dim=axis)
def _gelu(x):
    return torch.nn.functional.gelu(x, approximate="tanh")
def _silu(x):
    return torch.nn.functional.silu(x)
def _sigmoid(x):
    return torch.sigmoid(x)
def _layernorm(x, axis=-1, eps=1e-5):
    m = x.mean(dim=axis, keepdim=True)
    v = x.var(dim=axis, keepdim=True, unbiased=False)
    return (x - m) / torch.sqrt(v + eps)
def _scatter_add(tgt, idx, src, axis=0):
    return tgt.clone().index_add_(axis, idx, src)
def _segment_sum(src, seg, n):
    out = torch.zeros((n,) + src.shape[1:], dtype=src.dtype)
    return out.index_add_(0, seg, src)
def _pad(x, pw):
    flat = tuple(v for pair in reversed(pw) for v in pair)
    return torch.nn.functional.pad(x, flat)

kernel_name = 'standalone__mha_block_cached__near_ridge'

def setup_inputs():

    _w = (lambda a: (lambda t: t.to(torch.bfloat16) if t.is_floating_point() else t)(torch.as_tensor(a)))
    B, Sq, D = 16, 48, 1024
    H, Sk, Dh = 32, 48, 128
    return {
        "x": _w((lambda *s: torch.randn(*s, dtype=torch.bfloat16) * 0.8)(B, Sq, D)),
        "k_cache": _w((lambda *s: torch.randn(*s, dtype=torch.bfloat16) * 0.8)(B, H, Sk, Dh)),
        "v_cache": _w((lambda *s: torch.randn(*s, dtype=torch.bfloat16) * 0.05)(B, H, Sk, Dh)),
        "wq": _w((lambda *s: torch.randn(*s, dtype=torch.bfloat16) * 0.8)(D, H * Dh) * (D ** -0.5)),
        "wo": _w((lambda *s: torch.randn(*s, dtype=torch.bfloat16) * 0.05)(H * Dh, D) * ((H * Dh) ** -0.5)),
    }

def reference(x, k_cache, v_cache, wq, wo):
    B, Sq, D = x.shape
    H, Dh = 32, 128
    q = (lambda x, *d: x.permute(*d))((x @ wq).reshape(B, Sq, H, Dh), 0, 2, 1, 3)
    scores = torch.einsum("bhqd,bhkd->bhqk", q, k_cache) * (Dh ** -0.5)
    p = _softmax(scores, axis=-1)
    o = torch.einsum("bhqk,bhkd->bhqd", p, v_cache)
    return (lambda x, *d: x.permute(*d))(o, 0, 2, 1, 3).reshape(B, Sq, H * Dh) @ wo
```

```python
class Asm:
    def __init__(self):
        self.L = []
    def __call__(self, s):
        for line in s.split("\n"):
            self.L.append(line)
    def c(self, s):
        self.L.append("    ; " + s)
    def i(self, s):
        self.L.append("    " + s)
    def label(self, s):
        self.L.append(s + ":")
    def nop(self, n):
        while n > 0:
            k = min(n, 16)
            self.i(f"s_nop {k-1}")
            n -= k
    def text(self):
        return "\n".join(self.L) + "\n"

def v(a, n=1):
    return f"v{a}" if n == 1 else f"v[{a}:{a+n-1}]"
def s(a, n=1):
    return f"s{a}" if n == 1 else f"s[{a}:{a+n-1}]"
def acc(a, n=1):
    return f"a{a}" if n == 1 else f"a[{a}:{a+n-1}]"

class RA:
    def __init__(self, start, limit, name):
        self.p = start; self.limit = limit; self.name = name; self.map = {}
    def alloc(self, name, n=1, align=1):
        p = (self.p + align - 1) // align * align
        assert p + n <= self.limit, f"{self.name} overflow allocating {name}: {p}+{n} > {self.limit}"
        self.map[name] = (p, n)
        self.p = p + n
        return p

def kernel_header(A, name):
    A(f".globl {name}\n.p2align 8\n.type {name},@function\n{name}:")

def kernel_desc(A, name, nvgpr, accum, nsgpr=102):
    A('.section .rodata,"a"\n.p2align 6')
    A(f".amdhsa_kernel {name}")
    A(f"  .amdhsa_next_free_vgpr {nvgpr}\n  .amdhsa_next_free_sgpr {nsgpr}\n  .amdhsa_accum_offset {accum}")
    A("  .amdhsa_group_segment_fixed_size 0\n  .amdhsa_kernarg_size 64\n  .amdhsa_user_sgpr_count 2\n  .amdhsa_user_sgpr_kernarg_segment_ptr 1\n  .amdhsa_system_sgpr_workgroup_id_x 1\n.end_amdhsa_kernel")
```

```python
import re, sys
REG = re.compile(r'^(-|\|)?(abs\()?([vas])(\d+|\[(\d+):(\d+)\])\)?\|?$')
def regs(op):
    op = op.strip()
    if op in ('vcc',): return {('s','vcc')}
    if op in ('vcc_lo','vcc_hi'): return {('s','vcc')}
    if op == 'exec': return {('s','exec')}
    if op == 'm0': return {('s','m0')}
    m = REG.match(op)
    if not m: return set()
    k = m.group(3)
    if m.group(5) is not None:
        return {(k, i) for i in range(int(m.group(5)), int(m.group(6))+1)}
    return {(k, int(m.group(4)))}
TRANS = ('v_exp_','v_log_','v_rcp_','v_rsq_','v_sqrt_','v_sin_','v_cos_')
def parse(line):
    line = line.split(';')[0].split('//')[0].strip()
    if not line or line.endswith(':') or line.startswith('.'): return None
    parts = line.split(None, 1)
    mn = parts[0]
    ops = []
    if len(parts) > 1:
        cur = ''; depth = 0
        for ch in parts[1]:
            if ch == '[': depth += 1
            if ch == ']': depth -= 1
            if ch == ',' and depth == 0:
                ops.append(cur.strip()); cur = ''
            else: cur += ch
        ops.append(cur.strip())
    mods = ''
    if ops:
        t = ops[-1].split()
        if t:
            ops[-1] = t[0]; mods = ' '.join(t[1:])
    return mn, ops, mods
class I: pass
def classify(mn, ops, mods):
    x = I(); x.mn = mn; x.w = set(); x.r = set(); x.kind = 'salu'; x.ws = 1; x.passes = 0
    x.srcC = set(); x.srcAB = set(); x.store_wide = set(); x.lds_dma = False; x.dpp = 'row_' in mods or 'quad_perm' in mods or 'dpp' in mn
    if mn == 's_nop': x.ws = int(ops[0], 0) + 1; return x
    R = [regs(o) for o in ops]
    if mn.startswith('v_mfma'):
        x.kind = 'mfma'; x.w = R[0]; x.srcAB = R[1] | R[2]; x.srcC = R[3] if len(R) > 3 else set(); x.r = x.srcAB | x.srcC
        x.passes = 8 if '32x32' in mn else 4
        return x
    if mn.startswith('v_'):
        x.kind = 'valu'
        x.trans = mn.startswith(TRANS)
        if mn.startswith('v_cmp'):
            x.w = R[0]; x.r = set().union(*R[1:])
            if mn.startswith('v_cmpx'): x.w |= {('s','exec')}
        elif 'permlane' in mn and 'swap' in mn:
            x.w = R[0] | R[1]; x.r = R[0] | R[1]
        elif mn.startswith(('v_add_co','v_sub_co','v_addc_co','v_subb_co')):
            x.w = R[0] | R[1]; x.r = set().union(*R[2:])
        elif mn.startswith(('v_fmac','v_pk_fmac','v_dot2c')):
            x.w = R[0]; x.r = set().union(*R)
        else:
            x.w = R[0]; x.r = set().union(*R[1:]) if len(R) > 1 else set()
            if mn.startswith('v_cndmask') and len(ops) == 3: x.r |= {('s','vcc')}
        return x
    if mn.startswith('ds_'):
        x.kind = 'ds'
        if mn.startswith(('ds_read','ds_bpermute','ds_permute','ds_swizzle')) :
            x.w = R[0]; x.r = set().union(*R[1:])
        else:
            x.r = set().union(*R)
        return x
    if mn.startswith(('buffer_','global_','flat_')):
        x.kind = 'vmem'
        if mn in ('buffer_wbl2','buffer_inv'): return x
        lds = ' lds' in (' ' + mods) or mn.startswith('global_load_lds')
        x.lds_dma = lds
        if 'load' in mn and not lds:
            x.w = R[0]; x.r = set().union(*R[1:])
        elif 'atomic' in mn:
            x.r = set().union(*R)
            if 'sc0' in mods: x.w = R[0]
        else:
            x.r = set().union(*R)
            if 'store' in mn and ('x3' in mn or 'x4' in mn):
                x.store_wide = R[0] if mn.startswith('buffer') else R[1]
        if lds: x.r |= {('s','m0')}
        return x
    x.kind = 'salu'
    if mn.startswith(('s_cmp','s_waitcnt','s_barrier','s_branch','s_cbranch','s_endpgm','s_sleep','s_setprio')):
        x.r = set().union(*R) if R else set()
    else:
        x.w = R[0] if R else set(); x.r = set().union(*R[1:]) if len(R) > 1 else set()
    return x
def check(text, verbose=True):
    hist = []
    errs = []
    for ln, line in enumerate(text.split('\n'), 1):
        p = parse(line)
        if p is None: continue
        x = classify(*p)
        dist = 0
        for (y, yl, yline) in reversed(hist):
            if dist >= 20: break
            need = 0; why = ''
            def req(n, w):
                nonlocal need, why
                if n > need: need, why = n, w
            vreg = lambda S: {q for q in S if q[0] in 'va'}
            if y.kind == 'valu' and x.kind == 'mfma' and vreg(y.w) & x.r: req(2, 'VALU->MFMA')
            if y.kind == 'mfma':
                n_raw = 8 if y.passes == 4 else 12
                if x.kind == 'mfma':
                    if y.w & x.srcAB: req(n_raw, 'MFMA D->MFMA AB')
                    if y.w & x.srcC and not (y.w == x.srcC and y.passes == x.passes): req(6 if y.passes == 4 else 10, 'MFMA D->C partial')
                    if (y.w & x.w) and not (y.w == x.w): req(n_raw, 'MFMA WAW partial')
                elif x.kind in ('valu','ds','vmem'):
                    if y.w & (x.r | x.w): req(n_raw, 'MFMA D->VALU/mem')
                if x.kind == 'valu' and (y.srcC & x.w): req(3 if y.passes == 4 else 7, 'MFMA srcC WAR')
            if y.kind == 'valu':
                sw = {q for q in y.w if q[0] == 's'}
                if x.kind == 'vmem' and sw & x.r: req(5, 'VALU sgpr->VMEM')
                if x.kind == 'valu' and sw & x.r: req(2, 'VALU sgpr->VALU')
                if x.kind == 'valu' and 'permlane' in x.mn and vreg(y.w) & x.r: req(2, 'VALU->permlane')
                if x.kind == 'valu' and x.mn.startswith(('v_readfirstlane','v_readlane')) and vreg(y.w) & x.r: req(1, 'VALU->readlane')
                if x.kind == 'valu' and x.dpp and vreg(y.w) & x.r: req(2, 'VALU->DPP')
                if getattr(y, 'trans', False) and x.kind in ('valu','mfma') and not getattr(x, 'trans', False) and vreg(y.w) & x.r: req(1 if x.kind == 'valu' else 2, 'trans->use')
                if ('s','exec') in y.w and x.kind == 'mfma': req(4, 'exec->mfma')
            if y.kind == 'salu' and ('s','m0') in y.w and x.kind == 'vmem' and x.lds_dma: req(1, 'M0->DMA')
            if y.store_wide and x.kind == 'valu' and (y.store_wide & x.w): req(2, 'store data WAR')
            if y.store_wide and x.kind in ('ds','vmem') and (y.store_wide & x.w): req(1, 'store data WAR(mem)')
            if need > dist:
                errs.append(f"line {ln}: '{line.strip()}' needs {need} states after line {yl}: '{yline.strip()}' ({why}), has {dist}")
            dist += y.ws
        hist.append((x, ln, line))
        if len(hist) > 64: hist.pop(0)
    return errs
if __name__ == '__main__':
    e = check(open(sys.argv[1]).read())
    for q in e[:50]: print(q)
    print(len(e), 'hazard findings')
```

```python
from asmlib import *

SLOT = 28672
XOFF = 16384
KB = 4*SLOT
VB = KB + 24576
C2 = 0.08838834764831845 * 1.4426950408889634

import struct
def f2u(x): return struct.unpack('<I', struct.pack('<f', x))[0]

class K1:
    def __init__(self, A, stamps=False, mapping='A'):
        self.A = A; self.stamps = stamps; self.mapping = mapping
        self.SX, self.SWQ, self.SK, self.SV, self.SWS = 8, 12, 16, 20, 24
        self.sP, self.sH, self.sWV, self.sBB, self.sDH = 28, 29, 30, 31, 32
        self.sT0, self.sT1, self.sT2, self.sT3 = 33, 34, 35, 36
        self.sM0W, self.sM0X, self.sOW, self.sOX = 40, 41, 42, 43
        self.sC2 = 44
        self.sStamp = 60
        self.nstamp = 0
        R = RA(1, 256, 'v'); self.R = R
        self.vL = R.alloc('lane')
        self.vT = R.alloc('tmp', 8)
        self.vWq = R.alloc('wq', 4); self.vX = R.alloc('x', 3)
        self.vK = R.alloc('k', 6); self.vV = R.alloc('v', 6)
        self.vAlo = R.alloc('alo', 4); self.vAhi = R.alloc('ahi', 4)
        self.vBlo = R.alloc('blo', 2); self.vBhi = R.alloc('bhi', 2)
        self.vKr = R.alloc('kread', 4)
        self.vVr = R.alloc('vread', 4)
        self.vSx = R.alloc('sx', 2)
        self.vO = R.alloc('ostore', 1)
        self.FA = [R.alloc('fa0', 16, 4), R.alloc('fa1', 16, 4)]
        self.FB = [R.alloc('fb0', 12, 4), R.alloc('fb1', 12, 4)]
        self.ACC = R.alloc('acc', 48, 4)
        self.KF = R.alloc('kf', 24, 4)
        self.QF = R.alloc('qf', 24, 4)
        self.S = R.alloc('S', 36, 4)
    def stamp(self):
        if not self.stamps: return
        r = self.sStamp + 2*self.nstamp; self.nstamp += 1
        self.A.i(f"s_memtime {s(r,2)}")

    def setup(self):
        A = self.A
        A.i("s_load_dwordx4 s[4:7], s[0:1], 0")
        A.i("s_load_dwordx4 s[48:51], s[0:1], 16")
        A.i("s_load_dwordx2 s[52:53], s[0:1], 56")
        A.i(f"v_and_b32 {v(self.vL)}, 63, v0")
        A.i(f"v_lshrrev_b32 {v(self.vT)}, 6, v0")
        A.i("s_and_b32 s33, s2, 7")
        A.i(f"v_readfirstlane_b32 {s(self.sWV)}, {v(self.vT)}")
        A.i("s_lshr_b32 s34, s2, 3")
        if self.mapping == 'A':
            A.i("s_and_b32 s35, s34, 3"); A.i("s_lshl_b32 s36, s33, 2"); A.i(f"s_add_u32 {s(self.sH)}, s35, s36")
            A.i(f"s_lshr_b32 {s(self.sP)}, s34, 2")
        else:
            A.i("s_and_b32 s35, s33, 3"); A.i("s_lshl_b32 s35, s35, 3"); A.i("s_and_b32 s36, s34, 7"); A.i(f"s_add_u32 {s(self.sH)}, s35, s36")
            A.i("s_lshr_b32 s35, s33, 2"); A.i("s_lshl_b32 s35, s35, 2"); A.i("s_lshr_b32 s36, s34, 3"); A.i(f"s_add_u32 {s(self.sP)}, s35, s36")
        A.i(f"s_and_b32 {s(self.sBB)}, {s(self.sWV)}, 1")
        A.i(f"s_lshr_b32 {s(self.sDH)}, {s(self.sWV)}, 1")
        A.i(f"s_lshl_b32 {s(self.sM0W)}, {s(self.sWV)}, 12")
        A.i(f"s_mul_i32 {s(self.sM0X)}, {s(self.sWV)}, 3072")
        A.i(f"s_add_u32 {s(self.sM0X)}, {s(self.sM0X)}, {XOFF}")
        A.i(f"s_mov_b32 {s(self.sC2)}, 0x{f2u(C2):08x}")
        T = self.vT; L = self.vL
        A.i(f"v_lshrrev_b32 {v(T)}, 4, {v(L)}")
        A.i(f"v_and_b32 {v(T+1)}, 15, {v(L)}")
        A.i(f"v_lshlrev_b32 {v(T+2)}, 1, {v(T)}")
        A.i(f"v_xor_b32 {v(T+2)}, {v(T+2)}, {v(T+1)}")
        A.i(f"v_lshlrev_b32 {v(T+2)}, 4, {v(T+2)}")
        A.i(f"v_lshlrev_b32 {v(T+3)}, 13, {v(T)}")
        A.i(f"v_add_u32 {v(T+2)}, {v(T+2)}, {v(T+3)}")
        A.i(f"s_lshl_b32 s33, {s(self.sWV)}, 17")
        A.i(f"s_lshl_b32 s34, {s(self.sH)}, 8")
        A.i("s_add_u32 s33, s33, s34")
        A.i(f"v_add_u32 {v(T+2)}, s33, {v(T+2)}")
        for ii in range(4):
            x = (ii >> 1) << 7
            if x:
                A.i(f"v_xor_b32 {v(self.vWq+ii)}, {x}, {v(T+2)}")
                A.i(f"v_add_u32 {v(self.vWq+ii)}, {ii*4*8192}, {v(self.vWq+ii)}")
            else:
                A.i(f"v_add_u32 {v(self.vWq+ii)}, {ii*4*8192}, {v(T+2)}")
        A.i(f"v_lshrrev_b32 {v(T+3)}, 3, {v(L)}")
        A.i(f"s_mul_i32 s33, {s(self.sWV)}, 24")
        A.i(f"s_mul_i32 s34, {s(self.sP)}, 96")
        for ii in range(3):
            A.i(f"s_add_u32 s35, s33, {8*ii}")
            A.i(f"v_add_u32 {v(T+4)}, s35, {v(T+3)}")
            A.i(f"v_lshrrev_b32 {v(T+5)}, 1, {v(T+4)}")
            A.i(f"v_and_b32 {v(T+5)}, 7, {v(T+5)}")
            A.i(f"v_and_b32 {v(T+6)}, 7, {v(L)}")
            A.i(f"v_xor_b32 {v(T+5)}, {v(T+5)}, {v(T+6)}")
            A.i(f"v_lshlrev_b32 {v(T+5)}, 4, {v(T+5)}")
            A.i(f"v_add_u32 {v(T+4)}, s34, {v(T+4)}")
            A.i(f"v_lshlrev_b32 {v(T+4)}, 11, {v(T+4)}")
            A.i(f"v_add_u32 {v(self.vX+ii)}, {v(T+4)}, {v(T+5)}")
        A.i("s_waitcnt lgkmcnt(0)")
        def srd(d, lo, size):
            A.i(f"s_mov_b32 {s(d)}, s{lo}"); A.i(f"s_mov_b32 {s(d+1)}, s{lo+1}")
            A.i(f"s_mov_b32 {s(d+2)}, {size}"); A.i(f"s_mov_b32 {s(d+3)}, 0x20000")
        srd(self.SX, 4, 1572864); srd(self.SWQ, 50, 8388608)
        srd(self.SK, 6, 6291456); srd(self.SV, 48, 6291456); srd(self.SWS, 52, 0x10000000)

    def dma_stage_items(self, st):
        A = self.A; slot = (st % 4) * SLOT
        items = []
        for ii in range(4):
            items.append(('w', ii, slot + ii*1024))
        for ii in range(3):
            items.append(('x', ii, slot + ii*1024))
        return items
    def emit_soff(self, st):
        A = self.A
        A.i(f"s_mov_b32 {s(self.sOW)}, {st*524288}")
        A.i(f"s_mov_b32 {s(self.sOX)}, {st*128}")
    def emit_dma(self, it):
        A = self.A; t, ii, off = it
        if t == 'w':
            A.i(f"s_add_u32 m0, {s(self.sM0W)}, {off}")
            return f"buffer_load_dwordx4 {v(self.vWq+ii)}, {s(self.SWQ,4)}, {s(self.sOW)} offen lds"
        else:
            A.i(f"s_add_u32 m0, {s(self.sM0X)}, {off}")
            return f"buffer_load_dwordx4 {v(self.vX+ii)}, {s(self.SX,4)}, {s(self.sOX)} offen lds"

    def setup2(self):
        A = self.A; T = self.vT; L = self.vL
        A.i(f"v_and_b32 {v(T)}, 15, {v(L)}")
        A.i(f"v_lshrrev_b32 {v(T+1)}, 4, {v(L)}")
        A.i(f"v_bfe_u32 {v(T+2)}, {v(L)}, 2, 2")
        A.i(f"v_and_b32 {v(T+3)}, 3, {v(L)}")
        A.i(f"v_lshl_add_u32 {v(T+4)}, {v(T+1)}, 3, {v(T+2)}")
        A.i(f"v_lshlrev_b32 {v(T+4)}, 8, {v(T+4)}")
        A.i(f"v_and_b32 {v(T+5)}, 1, {v(T+3)}")
        A.i(f"v_lshl_add_u32 {v(T+4)}, {v(T+5)}, 3, {v(T+4)}")
        A.i(f"v_and_b32 {v(T+5)}, 1, {v(T+1)}")
        A.i(f"v_lshlrev_b32 {v(T+5)}, 3, {v(T+5)}")
        A.i(f"v_lshl_add_u32 {v(T+5)}, {v(T+2)}, 1, {v(T+5)}")
        A.i(f"v_lshrrev_b32 {v(T+6)}, 1, {v(T+3)}")
        A.i(f"s_lshl_b32 s33, {s(self.sDH)}, 3")
        A.i(f"v_add_u32 {v(T+6)}, s33, {v(T+6)}")
        A.i(f"v_xor_b32 {v(T+5)}, {v(T+5)}, {v(T+6)}")
        for dt in range(4):
            A.i(f"v_xor_b32 {v(T+6)}, {2*dt}, {v(T+5)}")
            A.i(f"v_lshl_add_u32 {v(self.vAlo+dt)}, {v(T+6)}, 4, {v(T+4)}")
            A.i(f"v_add_u32 {v(self.vAhi+dt)}, {2*SLOT}, {v(self.vAlo+dt)}")
        A.i(f"s_mul_i32 s33, {s(self.sBB)}, 48")
        A.i(f"v_add_u32 {v(T+4)}, s33, {v(T)}")
        A.i(f"v_lshlrev_b32 {v(T+4)}, 7, {v(T+4)}")
        A.i(f"v_add_u32 {v(T+4)}, {XOFF}, {v(T+4)}")
        A.i(f"v_lshrrev_b32 {v(T+5)}, 1, {v(T)}")
        A.i(f"v_xor_b32 {v(T+5)}, {v(T+5)}, {v(T+1)}")
        A.i(f"v_lshl_add_u32 {v(self.vBlo)}, {v(T+5)}, 4, {v(T+4)}")
        A.i(f"v_xor_b32 {v(self.vBlo+1)}, 64, {v(self.vBlo)}")
        for q in range(2):
            A.i(f"v_add_u32 {v(self.vBhi+q)}, {2*SLOT}, {v(self.vBlo+q)}")
        A.i(f"s_lshl_b32 s33, {s(self.sP)}, 6")
        A.i(f"s_add_u32 s33, s33, {s(self.sH)}")
        A.i("s_mul_i32 s33, s33, 12288")
        A.i(f"s_lshr_b32 s34, {s(self.sWV)}, 1")
        A.i("s_mul_i32 s34, s34, 393216")
        A.i("s_add_u32 s33, s33, s34")
        A.i(f"s_and_b32 s34, {s(self.sWV)}, 1")
        A.i("s_mul_i32 s34, s34, 24")
        for qq in range(6):
            A.i(f"s_add_u32 s35, s34, {4*qq}")
            A.i(f"v_add_u32 {v(T+4)}, s35, {v(T+1)}")
            A.i(f"v_lshlrev_b32 {v(T+5)}, 8, {v(T+4)}")
            A.i(f"v_add_u32 {v(T+5)}, s33, {v(T+5)}")
            A.i(f"v_and_b32 {v(T+6)}, 15, {v(T+4)}")
            A.i(f"v_xor_b32 {v(T+6)}, {v(T+6)}, {v(T)}")
            A.i(f"v_lshl_add_u32 {v(self.vK+qq)}, {v(T+6)}, 4, {v(T+5)}")
            A.i(f"v_and_b32 {v(T+6)}, 7, {v(T+4)}")
            A.i(f"v_lshlrev_b32 {v(T+6)}, 1, {v(T+6)}")
            A.i(f"v_xor_b32 {v(T+6)}, {v(T+6)}, {v(T)}")
            A.i(f"v_lshl_add_u32 {v(self.vV+qq)}, {v(T+6)}, 4, {v(T+5)}")
        A.i(f"s_mul_i32 s33, {s(self.sBB)}, 12288")
        A.i(f"s_add_u32 s33, s33, {KB}")
        A.i(f"v_lshlrev_b32 {v(T+4)}, 8, {v(T)}")
        A.i(f"v_add_u32 {v(T+4)}, s33, {v(T+4)}")
        A.i(f"v_and_b32 {v(T+5)}, 1, {v(T+1)}")
        A.i(f"v_lshl_add_u32 {v(T+4)}, {v(T+5)}, 3, {v(T+4)}")
        A.i(f"v_lshrrev_b32 {v(T+5)}, 1, {v(T+1)}")
        A.i(f"s_lshl_b32 s34, {s(self.sDH)}, 3")
        A.i(f"v_add_u32 {v(T+5)}, s34, {v(T+5)}")
        A.i(f"v_xor_b32 {v(T+5)}, {v(T+5)}, {v(T)}")
        for q in range(4):
            A.i(f"v_xor_b32 {v(T+6)}, {2*q}, {v(T+5)}")
            A.i(f"v_lshl_add_u32 {v(self.vKr+q)}, {v(T+6)}, 4, {v(T+4)}")
        A.i(f"s_mul_i32 s33, {s(self.sBB)}, 12288")
        A.i(f"s_add_u32 s33, s33, {VB}")
        A.i(f"v_lshl_add_u32 {v(T+4)}, {v(T+1)}, 2, {v(T+2)}")
        A.i(f"v_and_b32 {v(T+5)}, 7, {v(T+4)}")
        A.i(f"v_lshlrev_b32 {v(T+5)}, 1, {v(T+5)}")
        A.i(f"v_lshlrev_b32 {v(T+4)}, 8, {v(T+4)}")
        A.i(f"v_add_u32 {v(T+4)}, s33, {v(T+4)}")
        A.i(f"v_and_b32 {v(T+6)}, 1, {v(T+3)}")
        A.i(f"v_lshl_add_u32 {v(T+4)}, {v(T+6)}, 3, {v(T+4)}")
        A.i(f"v_lshrrev_b32 {v(T+6)}, 1, {v(T+3)}")
        A.i(f"s_lshl_b32 s34, {s(self.sDH)}, 3")
        A.i(f"v_add_u32 {v(T+6)}, s34, {v(T+6)}")
        A.i(f"v_xor_b32 {v(T+5)}, {v(T+5)}, {v(T+6)}")
        for dt in range(4):
            A.i(f"v_xor_b32 {v(T+6)}, {2*dt}, {v(T+5)}")
            A.i(f"v_lshl_add_u32 {v(self.vVr+dt)}, {v(T+6)}, 4, {v(T+4)}")
        A.i(f"s_mul_i32 s33, {s(self.sWV)}, 9216")
        A.i(f"v_lshlrev_b32 {v(T+4)}, 4, {v(L)}")
        A.i(f"v_add_u32 {v(self.vSx)}, s33, {v(T+4)}")
        A.i(f"s_xor_b32 s34, {s(self.sWV)}, 2")
        A.i("s_mul_i32 s34, s34, 9216")
        A.i(f"v_add_u32 {v(self.vSx+1)}, s34, {v(T+4)}")
        A.i(f"s_lshl_b32 s33, {s(self.sP)}, 5")
        A.i(f"s_add_u32 s33, s33, {s(self.sH)}")
        A.i("s_lshl_b32 s33, s33, 1")
        A.i(f"s_add_u32 s33, s33, {s(self.sBB)}")
        A.i("s_lshl_b32 s33, s33, 2")
        A.i(f"s_lshl_b32 s34, {s(self.sDH)}, 1")
        A.i("s_add_u32 s33, s33, s34")
        A.i("s_mul_i32 s33, s33, 3072")
        A.i(f"v_add_u32 {v(self.vO)}, s33, {v(T+4)}")

    def reads(self, st, ks, setn):
        slot = st % 4
        hi = slot >= 2
        base = (slot % 2) * SLOT
        out = []
        va = self.vAhi if hi else self.vAlo
        vb = self.vBhi if hi else self.vBlo
        for tt in range(3):
            out.append(f"ds_read_b128 {v(self.FB[setn]+4*tt,4)}, {v(vb+ks)} offset:{base + tt*2048}")
        for dt in range(4):
            for sec in range(2):
                out.append(f"ds_read_b64_tr_b16 {v(self.FA[setn]+4*dt+2*sec,2)}, {v(va+dt)} offset:{base + ks*8192 + sec*1024}")
        return out
    def mfmas(self, setn, first=False):
        out = []
        for dt in range(4):
            for tt in range(3):
                a = self.ACC + 4*(dt*3+tt)
                c = "0" if first else v(a,4)
                out.append(f"v_mfma_f32_16x16x32_bf16 {v(a,4)}, {v(self.FA[setn]+4*dt,4)}, {v(self.FB[setn]+4*tt,4)}, {c}")
        return out

    def gemm(self):
        A = self.A
        for st in range(4):
            self.emit_soff(st)
            for it in self.dma_stage_items(st):
                ins = self.emit_dma(it)
                A.i("s_nop 0")
                A.i(ins)
        self.setup2()
        self.stamp()
        A.i("s_waitcnt vmcnt(21)")
        A.i("s_barrier")
        for r in self.reads(0, 0, 0): A.i(r)
        for st in range(16):
            A.c(f"---- stage {st}")
            A.i("s_waitcnt lgkmcnt(0)")
            rd = self.reads(st, 1, 1)
            mf = self.mfmas(0, first=(st == 0))
            pend = getattr(self, 'pending', [])
            for k in range(12):
                if k < len(rd): A.i(rd[k])
                if pend and k % 4 == 1:
                    ins = self.emit_dma(pend.pop(0))
                    A.i(mf[k]); A.i(ins)
                else:
                    A.i(mf[k])
            assert not pend
            if st < 15:
                if st <= 11: n = 14
                elif st == 12: n = 14
                elif st == 13: n = 7 + 12
                else: n = 12
                A.i(f"s_waitcnt vmcnt({n}) lgkmcnt(0)")
                A.i("s_barrier")
                rd = self.reads(st+1, 0, 0)
            else:
                A.i("s_waitcnt lgkmcnt(0)")
                rd = []
            mf = self.mfmas(1)
            items = []
            if st + 4 <= 15:
                self.emit_soff(st+4)
                items = self.dma_stage_items(st+4)
            kv = []
            if st == 12:
                for qq in range(6): kv.append(('k', qq))
                for qq in range(6): kv.append(('v', qq))
                A.i(f"s_mul_i32 s33, {s(self.sWV)}, 6144")
            now, later = items[:4], items[4:]
            for k in range(12):
                if k < len(rd): A.i(rd[k])
                if now and k % 3 == 0:
                    ins = self.emit_dma(now.pop(0))
                    A.i(mf[k]); A.i(ins)
                elif kv:
                    t, qq = kv.pop(0)
                    if t == 'k':
                        A.i(f"s_add_u32 m0, s33, {KB + qq*1024}")
                        A.i(mf[k])
                        A.i(f"buffer_load_dwordx4 {v(self.vK+qq)}, {s(self.SK,4)}, 0 offen lds")
                    else:
                        A.i(f"s_add_u32 m0, s33, {VB + qq*1024}")
                        A.i(mf[k])
                        A.i(f"buffer_load_dwordx4 {v(self.vV+qq)}, {s(self.SV,4)}, 0 offen lds")
                else:
                    A.i(mf[k])
            assert not now and not kv
            self.pending = later
        self.stamp()

    def attention(self):
        A = self.A
        ACC, QF, KF, S = self.ACC, self.QF, self.KF, self.S
        A.i("s_waitcnt vmcnt(6)")
        A.i("s_barrier")
        for kt in range(3):
            for Tp in range(2):
                for half in range(2):
                    A.i(f"ds_read_b64 {v(KF + 4*(kt*2+Tp) + 2*half, 2)}, {v(self.vKr + 2*Tp + half)} offset:{kt*4096}")
        for Tp in range(2):
            for tt in range(3):
                q = QF + 4*(Tp*3+tt)
                a0 = ACC + 4*((2*Tp)*3+tt); a1 = ACC + 4*((2*Tp+1)*3+tt)
                A.i(f"v_cvt_pk_bf16_f32 {v(q)}, {v(a0)}, {v(a0+1)}")
                A.i(f"v_cvt_pk_bf16_f32 {v(q+1)}, {v(a0+2)}, {v(a0+3)}")
                A.i(f"v_cvt_pk_bf16_f32 {v(q+2)}, {v(a1)}, {v(a1+1)}")
                A.i(f"v_cvt_pk_bf16_f32 {v(q+3)}, {v(a1+2)}, {v(a1+3)}")
        A.i("s_waitcnt lgkmcnt(0)")
        A.nop(1)
        for Tp in range(2):
            for qt in range(3):
                for kt in range(3):
                    d = S + 4*(qt*3+kt)
                    c = "0" if Tp == 0 else v(d,4)
                    A.i(f"v_mfma_f32_16x16x32_bf16 {v(d,4)}, {v(KF+4*(kt*2+Tp),4)}, {v(QF+4*(Tp*3+qt),4)}, {c}")
        A.nop(8)
        for t in range(9):
            A.i(f"ds_write_b128 {v(self.vSx)}, {v(S+4*t,4)} offset:{t*1024}")
        A.i("s_waitcnt vmcnt(0) lgkmcnt(0)")
        A.i("s_barrier")
        P2 = self.FA[0]
        tmp = list(range(self.FA[0], self.FA[0]+16)) + list(range(self.FA[1], self.FA[1]+16)) + list(range(self.FB[0], self.FB[0]+4))
        assert self.FA[1] == self.FA[0]+16 and self.FB[0] == self.FA[1]+16
        for t in range(9):
            A.i(f"ds_read_b128 {v(P2+4*t,4)}, {v(self.vSx+1)} offset:{t*1024}")
        VF = KF
        vrd = [f"ds_read_b64_tr_b16 {v(VF + 6*dt + 2*kt, 2)}, {v(self.vVr+dt)} offset:{kt*4096}" for dt in range(4) for kt in range(3)]
        for r in vrd[:6]: A.i(r)
        A.i("s_waitcnt lgkmcnt(6)")
        for r in vrd[6:]: A.i(r)
        for t in range(36):
            A.i(f"v_add_f32 {v(S+t)}, {v(S+t)}, {v(P2+t)}")
        self.stamp()
        T = self.vT
        M = [T, T+1, T+2]; X = [T+3, T+4, T+5]
        def each(f):
            for qt in range(3): f(qt)
        sq = lambda qt, j: S + 12*qt + j
        each(lambda qt: A.i(f"v_max3_f32 {v(M[qt])}, {v(sq(qt,0))}, {v(sq(qt,1))}, {v(sq(qt,2))}"))
        for j in (3, 5, 7, 9):
            each(lambda qt: A.i(f"v_max3_f32 {v(M[qt])}, {v(M[qt])}, {v(sq(qt,j))}, {v(sq(qt,j+1))}"))
        each(lambda qt: A.i(f"v_max_f32 {v(M[qt])}, {v(M[qt])}, {v(sq(qt,11))}"))
        def xreduce(op):
            each(lambda qt: A.i(f"v_mov_b32 {v(X[qt])}, {v(M[qt])}"))
            A.nop(1)
            each(lambda qt: A.i(f"v_permlane16_swap_b32 {v(M[qt])}, {v(X[qt])}"))
            each(lambda qt: A.i(f"{op} {v(M[qt])}, {v(M[qt])}, {v(X[qt])}"))
            each(lambda qt: A.i(f"v_mov_b32 {v(X[qt])}, {v(M[qt])}"))
            A.nop(1)
            each(lambda qt: A.i(f"v_permlane32_swap_b32 {v(M[qt])}, {v(X[qt])}"))
            each(lambda qt: A.i(f"{op} {v(M[qt])}, {v(M[qt])}, {v(X[qt])}"))
        xreduce("v_max_f32")
        each(lambda qt: A.i(f"v_mul_f32 {v(M[qt])}, {s(self.sC2)}, {v(M[qt])}"))
        for j in range(12):
            each(lambda qt: A.i(f"v_fma_f32 {v(sq(qt,j))}, {v(sq(qt,j))}, {s(self.sC2)}, -{v(M[qt])}"))
        for j in range(12):
            each(lambda qt: A.i(f"v_exp_f32 {v(sq(qt,j))}, {v(sq(qt,j))}"))
        each(lambda qt: A.i(f"v_add_f32 {v(M[qt])}, {v(sq(qt,0))}, {v(sq(qt,1))}"))
        for j in range(2, 12):
            each(lambda qt: A.i(f"v_add_f32 {v(M[qt])}, {v(M[qt])}, {v(sq(qt,j))}"))
        xreduce("v_add_f32")
        each(lambda qt: A.i(f"v_rcp_f32 {v(M[qt])}, {v(M[qt])}"))
        A.nop(1)
        for j in range(12):
            each(lambda qt: A.i(f"v_mul_f32 {v(sq(qt,j))}, {v(sq(qt,j))}, {v(M[qt])}"))
        PF = QF
        for qt in range(3):
            for j in range(6):
                A.i(f"v_cvt_pk_bf16_f32 {v(PF+6*qt+j)}, {v(sq(qt,2*j))}, {v(sq(qt,2*j+1))}")
        A.i("s_waitcnt lgkmcnt(0)")
        A.nop(1)
        self.stamp()
        for dt in range(4):
            for qt in range(3):
                d = ACC + 4*(dt*3+qt)
                A.i(f"v_mfma_f32_16x16x32_bf16 {v(d,4)}, {v(VF+6*dt,4)}, {v(PF+6*qt,4)}, 0")
        for dt in range(4):
            for qt in range(3):
                d = ACC + 4*(dt*3+qt)
                A.i(f"v_mfma_f32_16x16x16_bf16 {v(d,4)}, {v(VF+6*dt+4,2)}, {v(PF+6*qt+4,2)}, {v(d,4)}")
        A.nop(8)
        OF = S
        for Tp in range(2):
            for qt in range(3):
                q = OF + 4*(Tp*3+qt)
                a0 = ACC + 4*((2*Tp)*3+qt); a1 = ACC + 4*((2*Tp+1)*3+qt)
                A.i(f"v_cvt_pk_bf16_f32 {v(q)}, {v(a0)}, {v(a0+1)}")
                A.i(f"v_cvt_pk_bf16_f32 {v(q+1)}, {v(a0+2)}, {v(a0+3)}")
                A.i(f"v_cvt_pk_bf16_f32 {v(q+2)}, {v(a1)}, {v(a1+1)}")
                A.i(f"v_cvt_pk_bf16_f32 {v(q+3)}, {v(a1+2)}, {v(a1+3)}")
        for Tp in range(2):
            for qt in range(3):
                q = OF + 4*(Tp*3+qt)
                off = (Tp*3+qt)*1024
                if off < 4096:
                    A.i(f"buffer_store_dwordx4 {v(q,4)}, {v(self.vO)}, {s(self.SWS,4)}, 0 offen offset:{off}")
                else:
                    A.i(f"s_mov_b32 s33, 4096")
                    A.i(f"buffer_store_dwordx4 {v(q,4)}, {v(self.vO)}, {s(self.SWS,4)}, s33 offen offset:{off-4096}")
        self.stamp()

    def write_stamps(self, base):
        if not self.stamps: return
        A = self.A
        A.i("s_waitcnt vmcnt(0) lgkmcnt(0)")
        A.i(f"s_memtime {s(self.sStamp + 2*self.nstamp, 2)}"); self.nstamp += 1
        A.i("s_waitcnt lgkmcnt(0)")
        for k in range(self.nstamp):
            A.i(f"v_mov_b32 {v(self.FA[0]+k)}, {s(self.sStamp+2*k)}")
        A.i(f"s_lshl_b32 s33, s2, 7")
        A.i(f"s_add_u32 s33, s33, {base}")
        A.i(f"v_mov_b32 {v(self.vT)}, s33")
        A.i("v_cmp_eq_u32 vcc, 0, v0")
        A.i("s_and_saveexec_b64 s[34:35], vcc")
        A.i("s_cbranch_execz L_k1_nostamp")
        for k in range(self.nstamp):
            A.i(f"buffer_store_dword {v(self.FA[0]+k)}, {v(self.vT)}, {s(self.SWS,4)}, 0 offen offset:{4*k}")
        A.label("L_k1_nostamp")

    def emit(self, name):
        A = self.A
        kernel_header(A, name)
        A.i("s_cmp_ge_u32 s2, 256")
        A.i("s_cbranch_scc1 L_k1_done")
        self.stamp()
        self.setup()
        self.gemm()
        self.attention()
        self.write_stamps(0x800000)
        A.label("L_k1_done")
        A.i("s_endpgm")
```

```python
from asmlib import *

class K2D:
    def __init__(self, A, stamps=False, depth=8):
        self.A = A; self.stamps = stamps; self.D = depth
        self.SWO, self.SWS, self.SOUT = 8, 12, 16
        self.sB, self.sJ, self.sWV = 20, 21, 22
        self.sM0, self.sOW, self.sOO = 23, 24, 25
        self.sStamp = 60; self.nstamp = 0
        R = RA(1, 256, 'v'); self.R = R
        self.vL = R.alloc('lane'); self.vT = R.alloc('tmp', 8)
        self.vW = R.alloc('wo', 4)
        self.vOo = R.alloc('o', 1)
        self.vA = R.alloc('a', 4)
        self.vR = R.alloc('red', 2)
        self.vOut = R.alloc('out', 1)
        self.FA = [R.alloc('fa0', 16, 4), R.alloc('fa1', 16, 4)]
        self.ACC = R.alloc('acc', 48, 4)
        self.FB = R.alloc('fb', 12*depth, 4)
    def stamp(self):
        if not self.stamps: return
        r = self.sStamp + 2*self.nstamp; self.nstamp += 1
        self.A.i(f"s_memtime {s(r,2)}")
    def setup(self):
        A = self.A; T = self.vT; L = self.vL
        A.i("s_load_dwordx4 s[4:7], s[0:1], 32")
        A.i("s_load_dwordx2 s[52:53], s[0:1], 56")
        A.i(f"v_and_b32 {v(L)}, 63, v0")
        A.i(f"v_lshrrev_b32 {v(T)}, 6, v0")
        A.i("s_and_b32 s33, s2, 7")
        A.i(f"v_readfirstlane_b32 {s(self.sWV)}, {v(T)}")
        A.i("s_lshr_b32 s34, s2, 3")
        A.i("s_and_b32 s35, s33, 1"); A.i("s_lshl_b32 s35, s35, 3"); A.i("s_and_b32 s36, s34, 7"); A.i(f"s_add_u32 {s(self.sB)}, s35, s36")
        A.i("s_lshr_b32 s35, s33, 1"); A.i("s_lshl_b32 s35, s35, 2"); A.i("s_lshr_b32 s36, s34, 3"); A.i(f"s_add_u32 {s(self.sJ)}, s35, s36")
        A.i(f"s_mul_i32 {s(self.sM0)}, {s(self.sWV)}, {self.D*4096}")
        A.i(f"v_lshrrev_b32 {v(T)}, 3, {v(L)}")
        A.i(f"v_lshlrev_b32 {v(T)}, 11, {v(T)}")
        A.i(f"v_lshrrev_b32 {v(T+1)}, 4, {v(L)}")
        A.i(f"v_lshlrev_b32 {v(T+1)}, 1, {v(T+1)}")
        A.i(f"v_and_b32 {v(T+2)}, 7, {v(L)}")
        A.i(f"v_xor_b32 {v(T+1)}, {v(T+1)}, {v(T+2)}")
        A.i(f"v_lshl_add_u32 {v(T)}, {v(T+1)}, 4, {v(T)}")
        A.i(f"s_lshl_b32 s33, {s(self.sJ)}, 7")
        A.i(f"s_lshl_b32 s34, {s(self.sWV)}, 21")
        A.i("s_add_u32 s33, s33, s34")
        A.i(f"v_add_u32 {v(T)}, s33, {v(T)}")
        for ii in range(4):
            A.i(f"v_add_u32 {v(self.vW+ii)}, {ii*8*2048}, {v(T)}")
        A.i(f"s_lshr_b32 s33, {s(self.sB)}, 1"); A.i("s_mul_i32 s33, s33, 786432")
        A.i(f"s_and_b32 s34, {s(self.sB)}, 1"); A.i("s_mul_i32 s34, s34, 12288"); A.i("s_add_u32 s33, s33, s34")
        A.i(f"s_mul_i32 s34, {s(self.sWV)}, 196608"); A.i("s_add_u32 s33, s33, s34")
        A.i(f"v_lshlrev_b32 {v(T+1)}, 4, {v(L)}")
        A.i(f"v_add_u32 {v(self.vOo)}, s33, {v(T+1)}")
        A.i("s_waitcnt lgkmcnt(0)")
        def srd(d, lo, size):
            A.i(f"s_mov_b32 {s(d)}, s{lo}"); A.i(f"s_mov_b32 {s(d+1)}, s{lo+1}")
            A.i(f"s_mov_b32 {s(d+2)}, {size}"); A.i(f"s_mov_b32 {s(d+3)}, 0x20000")
        srd(self.SWO, 4, 8388608); srd(self.SOUT, 6, 1572864); srd(self.SWS, 52, 0x10000000)
    def setup2(self):
        A = self.A; T = self.vT; L = self.vL
        A.i(f"v_lshrrev_b32 {v(T+1)}, 4, {v(L)}")
        A.i(f"v_bfe_u32 {v(T+2)}, {v(L)}, 2, 2")
        A.i(f"v_and_b32 {v(T+3)}, 3, {v(L)}")
        A.i(f"v_lshl_add_u32 {v(T+4)}, {v(T+1)}, 2, {v(T+2)}")
        A.i(f"v_lshrrev_b32 {v(T+5)}, 1, {v(T+4)}")
        A.i(f"v_and_b32 {v(T+5)}, 3, {v(T+5)}")
        A.i(f"v_lshlrev_b32 {v(T+5)}, 1, {v(T+5)}")
        A.i(f"v_lshrrev_b32 {v(T+6)}, 1, {v(T+3)}")
        A.i(f"v_xor_b32 {v(T+5)}, {v(T+5)}, {v(T+6)}")
        A.i(f"v_lshlrev_b32 {v(T+4)}, 7, {v(T+4)}")
        A.i(f"v_and_b32 {v(T+6)}, 1, {v(T+3)}")
        A.i(f"v_lshl_add_u32 {v(T+4)}, {v(T+6)}, 3, {v(T+4)}")
        A.i(f"v_add_u32 {v(T+4)}, {s(self.sM0)}, {v(T+4)}")
        for nt in range(4):
            A.i(f"v_xor_b32 {v(T+6)}, {2*nt}, {v(T+5)}")
            A.i(f"v_lshl_add_u32 {v(self.vA+nt)}, {v(T+6)}, 4, {v(T+4)}")
        A.i(f"v_lshlrev_b32 {v(self.vR)}, 4, {v(L)}")
        A.i(f"v_and_b32 {v(T)}, 15, {v(L)}")
        A.i(f"s_mul_i32 s33, {s(self.sB)}, 48")
        A.i(f"v_add_u32 {v(T)}, s33, {v(T)}")
        A.i(f"v_lshlrev_b32 {v(T)}, 11, {v(T)}")
        A.i(f"v_lshl_add_u32 {v(T)}, {v(T+1)}, 3, {v(T)}")
        A.i(f"s_lshl_b32 s33, {s(self.sJ)}, 7")
        A.i(f"s_lshl_b32 s34, {s(self.sWV)}, 5")
        A.i("s_add_u32 s33, s33, s34")
        A.i(f"v_add_u32 {v(self.vOut)}, s33, {v(T)}")
    def issue(self, st):
        D = self.D; slot = st % D
        out = []
        ow = st*32*2048
        oo = (st >> 2)*24576 + (st & 3)*3072
        out.append((f"s_mov_b32 {s(self.sOW)}, {ow}", None))
        out.append((f"s_mov_b32 {s(self.sOO)}, {oo}", None))
        for ii in range(4):
            out.append((f"s_add_u32 m0, {s(self.sM0)}, {slot*4096 + ii*1024}",
                        f"buffer_load_dwordx4 {v(self.vW+ii)}, {s(self.SWO,4)}, {s(self.sOW)} offen lds"))
        for tt in range(3):
            out.append((None, f"buffer_load_dwordx4 {v(self.FB+12*slot+4*tt,4)}, {v(self.vOo)}, {s(self.SWS,4)}, {s(self.sOO)} offen offset:{tt*1024}"))
        return out
    def reads(self, st, setn):
        slot = st % self.D
        return [f"ds_read_b64_tr_b16 {v(self.FA[setn]+4*nt+2*sec,2)}, {v(self.vA+nt)} offset:{slot*4096 + sec*2048}" for nt in range(4) for sec in range(2)]
    def mfmas(self, st, setn, first):
        slot = st % self.D
        out = []
        for nt in range(4):
            for tt in range(3):
                a = self.ACC + 4*(nt*3+tt)
                c = "0" if first else v(a,4)
                out.append(f"v_mfma_f32_16x16x32_bf16 {v(a,4)}, {v(self.FA[setn]+4*nt,4)}, {v(self.FB+12*slot+4*tt,4)}, {c}")
        return out
    def main(self):
        A = self.A; D = self.D; NS = 32
        for st in range(D):
            for pre, ins in self.issue(st):
                if pre: A.i(pre)
                if pre and ins: A.i("s_nop 0")
                if ins: A.i(ins)
        self.setup2()
        self.stamp()
        A.i(f"s_waitcnt vmcnt({7*(D-1)})")
        for r in self.reads(0, 0): A.i(r)
        for st in range(NS):
            A.c(f"---- step {st}")
            setn = st & 1
            nxt = st + 1 < NS
            if nxt:
                last = min(st + D - 1, NS - 1)
                n = 7*(last - (st+1))
                A.i(f"s_waitcnt vmcnt({n}) lgkmcnt(0)")
                rd = self.reads(st+1, setn ^ 1)
            else:
                A.i("s_waitcnt lgkmcnt(0)")
                rd = []
            mf = self.mfmas(st, setn, st == 0)
            iss = self.issue(st + D) if st + D < NS else []
            dma = [x for x in iss if x[1] is None or ' lds' in x[1]]
            old = [x for x in iss if x[1] is not None and ' lds' not in x[1]]
            for k in range(12):
                if k < len(rd): A.i(rd[k])
                if dma:
                    pre, ins = dma.pop(0)
                    A.i(pre)
                    A.i(mf[k])
                    if ins: A.i(ins)
                else:
                    A.i(mf[k])
            assert not dma
            for pre, ins in old: A.i(ins)
        self.stamp()
    def reduce_store(self):
        A = self.A; T = self.vT; ACC = self.ACC
        A.i("s_barrier")
        A.nop(8)
        A.i(f"s_mov_b32 s33, 0")
        for w in range(4):
            A.i(f"s_cmp_eq_u32 {s(self.sWV)}, {w}")
            A.i(f"s_cbranch_scc1 L_k2_red{w}")
        for w in range(4):
            A.label(f"L_k2_red{w}")
            for nt in range(4):
                if nt == w: continue
                src = (w - nt - 1) & 3
                for tt in range(3):
                    A.i(f"ds_write_b128 {v(self.vR)}, {v(ACC+4*(nt*3+tt),4)} offset:{nt*9216 + src*3072 + tt*1024}")
            A.i("s_waitcnt lgkmcnt(0)")
            A.i("s_barrier")
            F = self.FB
            for src in range(3):
                for tt in range(3):
                    A.i(f"ds_read_b128 {v(F+4*(src*3+tt),4)}, {v(self.vR)} offset:{w*9216 + src*3072 + tt*1024}")
            A.i("s_waitcnt lgkmcnt(0)")
            for tt in range(3):
                a = ACC + 4*(w*3+tt)
                for i in range(4):
                    A.i(f"v_add_f32 {v(F+4*tt+i)}, {v(F+4*tt+i)}, {v(F+4*(3+tt)+i)}")
                    A.i(f"v_add_f32 {v(a+i)}, {v(a+i)}, {v(F+4*(6+tt)+i)}")
                for i in range(4):
                    A.i(f"v_add_f32 {v(a+i)}, {v(a+i)}, {v(F+4*tt+i)}")
                A.i(f"v_cvt_pk_bf16_f32 {v(T+2*tt)}, {v(a)}, {v(a+1)}")
                A.i(f"v_cvt_pk_bf16_f32 {v(T+2*tt+1)}, {v(a+2)}, {v(a+3)}")
            A.i("s_branch L_k2_st")
        A.label("L_k2_st")
        for tt in range(3):
            A.i(f"s_mov_b32 s33, {tt*16*2048}")
            A.i(f"buffer_store_dwordx2 {v(T+2*tt,2)}, {v(self.vOut)}, {s(self.SOUT,4)}, s33 offen")
        self.stamp()
    def write_stamps(self, base):
        if not self.stamps: return
        A = self.A
        A.i("s_waitcnt vmcnt(0) lgkmcnt(0)")
        A.i(f"s_memtime {s(self.sStamp + 2*self.nstamp, 2)}"); self.nstamp += 1
        A.i("s_waitcnt lgkmcnt(0)")
        for k in range(self.nstamp):
            A.i(f"v_mov_b32 {v(self.FA[0]+k)}, {s(self.sStamp+2*k)}")
        A.i(f"s_lshl_b32 s33, s2, 7")
        A.i(f"s_add_u32 s33, s33, {base}")
        A.i(f"v_mov_b32 {v(self.vR)}, s33")
        A.i("v_cmp_eq_u32 vcc, 0, v0")
        A.i("s_and_saveexec_b64 s[34:35], vcc")
        A.i("s_cbranch_execz L_k2_nostamp")
        for k in range(self.nstamp):
            A.i(f"buffer_store_dword {v(self.FA[0]+k)}, {v(self.vR)}, {s(self.SWS,4)}, 0 offen offset:{4*k}")
        A.label("L_k2_nostamp")
    def emit(self, name):
        A = self.A
        kernel_header(A, name)
        A.i("s_cmp_ge_u32 s2, 256")
        A.i("s_cbranch_scc1 L_k2_done")
        self.stamp()
        self.setup()
        self.main()
        self.reduce_store()
        self.write_stamps(0x900000)
        A.label("L_k2_done")
        A.i("s_endpgm")
```

```python
import sys
from asmlib import *
from k1 import K1
from k2 import K2D
HDR = open('standalone__mha_block_cached__near_ridge.s.ref').read().split('; Override')[0]
def gen(stamps=False, mapping='A', depth=8):
    A = Asm()
    A(HDR.rstrip())
    A("; @launch kernel=mha_k1_kernel grid=(256,1,1) block=(256,1,1) lds=163840")
    A(f"; @launch kernel=mha_k2_kernel grid=(256,1,1) block=(256,1,1) lds={4*depth*4096 if 4*depth*4096 >= 36864 else 36864}")
    A('.amdgcn_target "amdgcn-amd-amdhsa--gfx950"\n.text')
    k1 = K1(A, stamps, mapping); k1.emit("mha_k1_kernel")
    k2 = K2D(A, stamps, depth); k2.emit("mha_k2_kernel")
    kernel_desc(A, "mha_k1_kernel", 256, 256)
    kernel_desc(A, "mha_k2_kernel", 256, 256)
    return A.text()
if __name__ == '__main__':
    out = sys.argv[1]
    stamps = 'stamps' in sys.argv
    t = gen(stamps=stamps)
    open(out, 'w').write(t)
    from hazcheck import check
    e = check(t)
    for q in e[:40]: print(q)
    print(len(e), "hazard findings;", len(t), "bytes")
```

```python
from asmlib import *

SLOT = 28672
XOFF = 16384
KB = 4*SLOT
VB = KB + 24576
C2 = 0.08838834764831845 * 1.4426950408889634

import struct
def f2u(x): return struct.unpack('<I', struct.pack('<f', x))[0]

class K1:
    def __init__(self, A, stamps=False, mapping='A', stagger=False, ntw='', ntx='', ntkv=''):
        self.A = A; self.stamps = stamps; self.mapping = mapping
        self.stagger = stagger; self.ntw = ntw; self.ntx = ntx; self.ntkv = ntkv; self.sOff = 45
        self.SX, self.SWQ, self.SK, self.SV, self.SWS = 8, 12, 16, 20, 24
        self.sP, self.sH, self.sWV, self.sBB, self.sDH = 28, 29, 30, 31, 32
        self.sT0, self.sT1, self.sT2, self.sT3 = 33, 34, 35, 36
        self.sM0W, self.sM0X, self.sOW, self.sOX = 40, 41, 42, 43
        self.sC2 = 44
        self.sStamp = 60
        self.nstamp = 0
        R = RA(1, 256, 'v'); self.R = R
        self.vL = R.alloc('lane')
        self.vT = R.alloc('tmp', 8)
        self.vWq = R.alloc('wq', 4); self.vX = R.alloc('x', 3)
        self.vK = R.alloc('k', 6); self.vV = R.alloc('v', 6)
        self.vAlo = R.alloc('alo', 4); self.vAhi = R.alloc('ahi', 4)
        self.vBlo = R.alloc('blo', 2); self.vBhi = R.alloc('bhi', 2)
        self.vKr = R.alloc('kread', 4)
        self.vVr = R.alloc('vread', 4)
        self.vSx = R.alloc('sx', 2)
        self.vO = R.alloc('ostore', 1)
        self.FA = [R.alloc('fa0', 16, 4), R.alloc('fa1', 16, 4)]
        self.FB = [R.alloc('fb0', 12, 4), R.alloc('fb1', 12, 4)]
        self.ACC = R.alloc('acc', 48, 4)
        self.KF = R.alloc('kf', 24, 4)
        self.QF = R.alloc('qf', 24, 4)
        self.S = R.alloc('S', 36, 4)
    def stamp(self):
        if not self.stamps: return
        r = self.sStamp + 2*self.nstamp; self.nstamp += 1
        self.A.i(f"s_memtime {s(r,2)}")

    def setup(self):
        A = self.A
        A.i("s_load_dwordx4 s[4:7], s[0:1], 0")
        A.i("s_load_dwordx4 s[48:51], s[0:1], 16")
        A.i("s_load_dwordx2 s[52:53], s[0:1], 56")
        A.i(f"v_and_b32 {v(self.vL)}, 63, v0")
        A.i(f"v_lshrrev_b32 {v(self.vT)}, 6, v0")
        A.i("s_and_b32 s33, s2, 7")
        A.i(f"v_readfirstlane_b32 {s(self.sWV)}, {v(self.vT)}")
        A.i("s_lshr_b32 s34, s2, 3")
        if self.mapping == 'A':
            A.i("s_and_b32 s35, s34, 3"); A.i("s_lshl_b32 s36, s33, 2"); A.i(f"s_add_u32 {s(self.sH)}, s35, s36")
            A.i(f"s_lshr_b32 {s(self.sP)}, s34, 2")
        else:
            A.i("s_and_b32 s35, s33, 3"); A.i("s_lshl_b32 s35, s35, 3"); A.i("s_and_b32 s36, s34, 7"); A.i(f"s_add_u32 {s(self.sH)}, s35, s36")
            A.i("s_lshr_b32 s35, s33, 2"); A.i("s_lshl_b32 s35, s35, 2"); A.i("s_lshr_b32 s36, s34, 3"); A.i(f"s_add_u32 {s(self.sP)}, s35, s36")
        A.i(f"s_and_b32 {s(self.sBB)}, {s(self.sWV)}, 1")
        A.i(f"s_lshr_b32 {s(self.sDH)}, {s(self.sWV)}, 1")
        A.i(f"s_lshl_b32 {s(self.sM0W)}, {s(self.sWV)}, 12")
        A.i(f"s_mul_i32 {s(self.sM0X)}, {s(self.sWV)}, 3072")
        A.i(f"s_add_u32 {s(self.sM0X)}, {s(self.sM0X)}, {XOFF}")
        A.i(f"s_mov_b32 {s(self.sC2)}, 0x{f2u(C2):08x}")
        if self.stagger:
            A.i(f"s_lshl_b32 s33, {s(self.sP)}, 1")
            A.i(f"s_and_b32 s34, {s(self.sH)}, 3"); A.i("s_lshl_b32 s34, s34, 2"); A.i("s_add_u32 s33, s33, s34")
            A.i(f"s_lshr_b32 s34, {s(self.sH)}, 2"); A.i("s_add_u32 s33, s33, s34")
            A.i(f"s_and_b32 {s(self.sOff)}, s33, 15")
        T = self.vT; L = self.vL
        A.i(f"v_lshrrev_b32 {v(T)}, 4, {v(L)}")
        A.i(f"v_and_b32 {v(T+1)}, 15, {v(L)}")
        A.i(f"v_lshlrev_b32 {v(T+2)}, 1, {v(T)}")
        A.i(f"v_xor_b32 {v(T+2)}, {v(T+2)}, {v(T+1)}")
        A.i(f"v_lshlrev_b32 {v(T+2)}, 4, {v(T+2)}")
        A.i(f"v_lshlrev_b32 {v(T+3)}, 13, {v(T)}")
        A.i(f"v_add_u32 {v(T+2)}, {v(T+2)}, {v(T+3)}")
        A.i(f"s_lshl_b32 s33, {s(self.sWV)}, 17")
        A.i(f"s_lshl_b32 s34, {s(self.sH)}, 8")
        A.i("s_add_u32 s33, s33, s34")
        A.i(f"v_add_u32 {v(T+2)}, s33, {v(T+2)}")
        for ii in range(4):
            x = (ii >> 1) << 7
            if x:
                A.i(f"v_xor_b32 {v(self.vWq+ii)}, {x}, {v(T+2)}")
                A.i(f"v_add_u32 {v(self.vWq+ii)}, {ii*4*8192}, {v(self.vWq+ii)}")
            else:
                A.i(f"v_add_u32 {v(self.vWq+ii)}, {ii*4*8192}, {v(T+2)}")
        A.i(f"v_lshrrev_b32 {v(T+3)}, 3, {v(L)}")
        A.i(f"s_mul_i32 s33, {s(self.sWV)}, 24")
        A.i(f"s_mul_i32 s34, {s(self.sP)}, 96")
        for ii in range(3):
            A.i(f"s_add_u32 s35, s33, {8*ii}")
            A.i(f"v_add_u32 {v(T+4)}, s35, {v(T+3)}")
            A.i(f"v_lshrrev_b32 {v(T+5)}, 1, {v(T+4)}")
            A.i(f"v_and_b32 {v(T+5)}, 7, {v(T+5)}")
            A.i(f"v_and_b32 {v(T+6)}, 7, {v(L)}")
            A.i(f"v_xor_b32 {v(T+5)}, {v(T+5)}, {v(T+6)}")
            A.i(f"v_lshlrev_b32 {v(T+5)}, 4, {v(T+5)}")
            A.i(f"v_add_u32 {v(T+4)}, s34, {v(T+4)}")
            A.i(f"v_lshlrev_b32 {v(T+4)}, 11, {v(T+4)}")
            A.i(f"v_add_u32 {v(self.vX+ii)}, {v(T+4)}, {v(T+5)}")
        A.i("s_waitcnt lgkmcnt(0)")
        def srd(d, lo, size):
            A.i(f"s_mov_b32 {s(d)}, s{lo}"); A.i(f"s_mov_b32 {s(d+1)}, s{lo+1}")
            A.i(f"s_mov_b32 {s(d+2)}, {size}"); A.i(f"s_mov_b32 {s(d+3)}, 0x20000")
        srd(self.SX, 4, 1572864); srd(self.SWQ, 50, 8388608)
        srd(self.SK, 6, 6291456); srd(self.SV, 48, 6291456); srd(self.SWS, 52, 0x10000000)

    def dma_stage_items(self, st):
        A = self.A; slot = (st % 4) * SLOT
        items = []
        for ii in range(4):
            items.append(('w', ii, slot + ii*1024))
        for ii in range(3):
            items.append(('x', ii, slot + ii*1024))
        return items
    def emit_soff(self, st):
        A = self.A
        if self.stagger:
            A.i(f"s_add_u32 {s(self.sOX)}, {s(self.sOff)}, {st}")
            A.i(f"s_and_b32 {s(self.sOX)}, {s(self.sOX)}, 15")
            A.i(f"s_lshl_b32 {s(self.sOW)}, {s(self.sOX)}, 19")
            A.i(f"s_lshl_b32 {s(self.sOX)}, {s(self.sOX)}, 7")
        else:
            A.i(f"s_mov_b32 {s(self.sOW)}, {st*524288}")
            A.i(f"s_mov_b32 {s(self.sOX)}, {st*128}")
    def emit_dma(self, it):
        A = self.A; t, ii, off = it
        if t == 'w':
            A.i(f"s_add_u32 m0, {s(self.sM0W)}, {off}")
            return f"buffer_load_dwordx4 {v(self.vWq+ii)}, {s(self.SWQ,4)}, {s(self.sOW)} offen {self.ntw} lds"
        else:
            A.i(f"s_add_u32 m0, {s(self.sM0X)}, {off}")
            return f"buffer_load_dwordx4 {v(self.vX+ii)}, {s(self.SX,4)}, {s(self.sOX)} offen {self.ntx} lds"

    def setup2(self):
        A = self.A; T = self.vT; L = self.vL
        A.i(f"v_and_b32 {v(T)}, 15, {v(L)}")
        A.i(f"v_lshrrev_b32 {v(T+1)}, 4, {v(L)}")
        A.i(f"v_bfe_u32 {v(T+2)}, {v(L)}, 2, 2")
        A.i(f"v_and_b32 {v(T+3)}, 3, {v(L)}")
        A.i(f"v_lshl_add_u32 {v(T+4)}, {v(T+1)}, 3, {v(T+2)}")
        A.i(f"v_lshlrev_b32 {v(T+4)}, 8, {v(T+4)}")
        A.i(f"v_and_b32 {v(T+5)}, 1, {v(T+3)}")
        A.i(f"v_lshl_add_u32 {v(T+4)}, {v(T+5)}, 3, {v(T+4)}")
        A.i(f"v_and_b32 {v(T+5)}, 1, {v(T+1)}")
        A.i(f"v_lshlrev_b32 {v(T+5)}, 3, {v(T+5)}")
        A.i(f"v_lshl_add_u32 {v(T+5)}, {v(T+2)}, 1, {v(T+5)}")
        A.i(f"v_lshrrev_b32 {v(T+6)}, 1, {v(T+3)}")
        A.i(f"s_lshl_b32 s33, {s(self.sDH)}, 3")
        A.i(f"v_add_u32 {v(T+6)}, s33, {v(T+6)}")
        A.i(f"v_xor_b32 {v(T+5)}, {v(T+5)}, {v(T+6)}")
        for dt in range(4):
            A.i(f"v_xor_b32 {v(T+6)}, {2*dt}, {v(T+5)}")
            A.i(f"v_lshl_add_u32 {v(self.vAlo+dt)}, {v(T+6)}, 4, {v(T+4)}")
            A.i(f"v_add_u32 {v(self.vAhi+dt)}, {2*SLOT}, {v(self.vAlo+dt)}")
        A.i(f"s_mul_i32 s33, {s(self.sBB)}, 48")
        A.i(f"v_add_u32 {v(T+4)}, s33, {v(T)}")
        A.i(f"v_lshlrev_b32 {v(T+4)}, 7, {v(T+4)}")
        A.i(f"v_add_u32 {v(T+4)}, {XOFF}, {v(T+4)}")
        A.i(f"v_lshrrev_b32 {v(T+5)}, 1, {v(T)}")
        A.i(f"v_xor_b32 {v(T+5)}, {v(T+5)}, {v(T+1)}")
        A.i(f"v_lshl_add_u32 {v(self.vBlo)}, {v(T+5)}, 4, {v(T+4)}")
        A.i(f"v_xor_b32 {v(self.vBlo+1)}, 64, {v(self.vBlo)}")
        for q in range(2):
            A.i(f"v_add_u32 {v(self.vBhi+q)}, {2*SLOT}, {v(self.vBlo+q)}")
        A.i(f"s_lshl_b32 s33, {s(self.sP)}, 6")
        A.i(f"s_add_u32 s33, s33, {s(self.sH)}")
        A.i("s_mul_i32 s33, s33, 12288")
        A.i(f"s_lshr_b32 s34, {s(self.sWV)}, 1")
        A.i("s_mul_i32 s34, s34, 393216")
        A.i("s_add_u32 s33, s33, s34")
        A.i(f"s_and_b32 s34, {s(self.sWV)}, 1")
        A.i("s_mul_i32 s34, s34, 24")
        for qq in range(6):
            A.i(f"s_add_u32 s35, s34, {4*qq}")
            A.i(f"v_add_u32 {v(T+4)}, s35, {v(T+1)}")
            A.i(f"v_lshlrev_b32 {v(T+5)}, 8, {v(T+4)}")
            A.i(f"v_add_u32 {v(T+5)}, s33, {v(T+5)}")
            A.i(f"v_and_b32 {v(T+6)}, 15, {v(T+4)}")
            A.i(f"v_xor_b32 {v(T+6)}, {v(T+6)}, {v(T)}")
            A.i(f"v_lshl_add_u32 {v(self.vK+qq)}, {v(T+6)}, 4, {v(T+5)}")
            A.i(f"v_and_b32 {v(T+6)}, 7, {v(T+4)}")
            A.i(f"v_lshlrev_b32 {v(T+6)}, 1, {v(T+6)}")
            A.i(f"v_xor_b32 {v(T+6)}, {v(T+6)}, {v(T)}")
            A.i(f"v_lshl_add_u32 {v(self.vV+qq)}, {v(T+6)}, 4, {v(T+5)}")
        A.i(f"s_mul_i32 s33, {s(self.sBB)}, 12288")
        A.i(f"s_add_u32 s33, s33, {KB}")
        A.i(f"v_lshlrev_b32 {v(T+4)}, 8, {v(T)}")
        A.i(f"v_add_u32 {v(T+4)}, s33, {v(T+4)}")
        A.i(f"v_and_b32 {v(T+5)}, 1, {v(T+1)}")
        A.i(f"v_lshl_add_u32 {v(T+4)}, {v(T+5)}, 3, {v(T+4)}")
        A.i(f"v_lshrrev_b32 {v(T+5)}, 1, {v(T+1)}")
        A.i(f"s_lshl_b32 s34, {s(self.sDH)}, 3")
        A.i(f"v_add_u32 {v(T+5)}, s34, {v(T+5)}")
        A.i(f"v_xor_b32 {v(T+5)}, {v(T+5)}, {v(T)}")
        for q in range(4):
            A.i(f"v_xor_b32 {v(T+6)}, {2*q}, {v(T+5)}")
            A.i(f"v_lshl_add_u32 {v(self.vKr+q)}, {v(T+6)}, 4, {v(T+4)}")
        A.i(f"s_mul_i32 s33, {s(self.sBB)}, 12288")
        A.i(f"s_add_u32 s33, s33, {VB}")
        A.i(f"v_lshl_add_u32 {v(T+4)}, {v(T+1)}, 2, {v(T+2)}")
        A.i(f"v_and_b32 {v(T+5)}, 7, {v(T+4)}")
        A.i(f"v_lshlrev_b32 {v(T+5)}, 1, {v(T+5)}")
        A.i(f"v_lshlrev_b32 {v(T+4)}, 8, {v(T+4)}")
        A.i(f"v_add_u32 {v(T+4)}, s33, {v(T+4)}")
        A.i(f"v_and_b32 {v(T+6)}, 1, {v(T+3)}")
        A.i(f"v_lshl_add_u32 {v(T+4)}, {v(T+6)}, 3, {v(T+4)}")
        A.i(f"v_lshrrev_b32 {v(T+6)}, 1, {v(T+3)}")
        A.i(f"s_lshl_b32 s34, {s(self.sDH)}, 3")
        A.i(f"v_add_u32 {v(T+6)}, s34, {v(T+6)}")
        A.i(f"v_xor_b32 {v(T+5)}, {v(T+5)}, {v(T+6)}")
        for dt in range(4):
            A.i(f"v_xor_b32 {v(T+6)}, {2*dt}, {v(T+5)}")
            A.i(f"v_lshl_add_u32 {v(self.vVr+dt)}, {v(T+6)}, 4, {v(T+4)}")
        A.i(f"s_mul_i32 s33, {s(self.sWV)}, 9216")
        A.i(f"v_lshlrev_b32 {v(T+4)}, 4, {v(L)}")
        A.i(f"v_add_u32 {v(self.vSx)}, s33, {v(T+4)}")
        A.i(f"s_xor_b32 s34, {s(self.sWV)}, 2")
        A.i("s_mul_i32 s34, s34, 9216")
        A.i(f"v_add_u32 {v(self.vSx+1)}, s34, {v(T+4)}")
        A.i(f"s_lshl_b32 s33, {s(self.sP)}, 5")
        A.i(f"s_add_u32 s33, s33, {s(self.sH)}")
        A.i("s_lshl_b32 s33, s33, 1")
        A.i(f"s_add_u32 s33, s33, {s(self.sBB)}")
        A.i("s_lshl_b32 s33, s33, 2")
        A.i(f"s_lshl_b32 s34, {s(self.sDH)}, 1")
        A.i("s_add_u32 s33, s33, s34")
        A.i("s_mul_i32 s33, s33, 3072")
        A.i(f"v_add_u32 {v(self.vO)}, s33, {v(T+4)}")

    def reads(self, st, ks, setn):
        slot = st % 4
        hi = slot >= 2
        base = (slot % 2) * SLOT
        out = []
        va = self.vAhi if hi else self.vAlo
        vb = self.vBhi if hi else self.vBlo
        for tt in range(3):
            out.append(f"ds_read_b128 {v(self.FB[setn]+4*tt,4)}, {v(vb+ks)} offset:{base + tt*2048}")
        for dt in range(4):
            for sec in range(2):
                out.append(f"ds_read_b64_tr_b16 {v(self.FA[setn]+4*dt+2*sec,2)}, {v(va+dt)} offset:{base + ks*8192 + sec*1024}")
        return out
    def mfmas(self, setn, first=False):
        out = []
        for dt in range(4):
            for tt in range(3):
                a = self.ACC + 4*(dt*3+tt)
                c = "0" if first else v(a,4)
                out.append(f"v_mfma_f32_16x16x32_bf16 {v(a,4)}, {v(self.FA[setn]+4*dt,4)}, {v(self.FB[setn]+4*tt,4)}, {c}")
        return out

    def gemm(self):
        A = self.A
        for st in range(4):
            self.emit_soff(st)
            for it in self.dma_stage_items(st):
                ins = self.emit_dma(it)
                A.i("s_nop 0")
                A.i(ins)
        self.setup2()
        self.stamp()
        A.i("s_waitcnt vmcnt(21)")
        A.i("s_barrier")
        for r in self.reads(0, 0, 0): A.i(r)
        for st in range(16):
            A.c(f"---- stage {st}")
            A.i("s_waitcnt lgkmcnt(0)")
            rd = self.reads(st, 1, 1)
            mf = self.mfmas(0, first=(st == 0))
            pend = getattr(self, 'pending', [])
            for k in range(12):
                if k < len(rd): A.i(rd[k])
                if pend and k % 4 == 1:
                    ins = self.emit_dma(pend.pop(0))
                    A.i(mf[k]); A.i(ins)
                else:
                    A.i(mf[k])
            assert not pend
            if st < 15:
                if st <= 11: n = 14
                elif st == 12: n = 14
                elif st == 13: n = 7 + 12
                else: n = 12
                A.i(f"s_waitcnt vmcnt({n}) lgkmcnt(0)")
                A.i("s_barrier")
                rd = self.reads(st+1, 0, 0)
            else:
                A.i("s_waitcnt lgkmcnt(0)")
                rd = []
            mf = self.mfmas(1)
            items = []
            if st + 4 <= 15:
                self.emit_soff(st+4)
                items = self.dma_stage_items(st+4)
            kv = []
            if st == 12:
                for qq in range(6): kv.append(('k', qq))
                for qq in range(6): kv.append(('v', qq))
                A.i(f"s_mul_i32 s33, {s(self.sWV)}, 6144")
            now, later = items[:4], items[4:]
            for k in range(12):
                if k < len(rd): A.i(rd[k])
                if now and k % 3 == 0:
                    ins = self.emit_dma(now.pop(0))
                    A.i(mf[k]); A.i(ins)
                elif kv:
                    t, qq = kv.pop(0)
                    if t == 'k':
                        A.i(f"s_add_u32 m0, s33, {KB + qq*1024}")
                        A.i(mf[k])
                        A.i(f"buffer_load_dwordx4 {v(self.vK+qq)}, {s(self.SK,4)}, 0 offen {self.ntkv} lds")
                    else:
                        A.i(f"s_add_u32 m0, s33, {VB + qq*1024}")
                        A.i(mf[k])
                        A.i(f"buffer_load_dwordx4 {v(self.vV+qq)}, {s(self.SV,4)}, 0 offen {self.ntkv} lds")
                else:
                    A.i(mf[k])
            assert not now and not kv
            self.pending = later
        self.stamp()

    def attention(self):
        A = self.A
        ACC, QF, KF, S = self.ACC, self.QF, self.KF, self.S
        A.i("s_waitcnt vmcnt(6)")
        A.i("s_barrier")
        for kt in range(3):
            for Tp in range(2):
                for half in range(2):
                    A.i(f"ds_read_b64 {v(KF + 4*(kt*2+Tp) + 2*half, 2)}, {v(self.vKr + 2*Tp + half)} offset:{kt*4096}")
        for Tp in range(2):
            for tt in range(3):
                q = QF + 4*(Tp*3+tt)
                a0 = ACC + 4*((2*Tp)*3+tt); a1 = ACC + 4*((2*Tp+1)*3+tt)
                A.i(f"v_cvt_pk_bf16_f32 {v(q)}, {v(a0)}, {v(a0+1)}")
                A.i(f"v_cvt_pk_bf16_f32 {v(q+1)}, {v(a0+2)}, {v(a0+3)}")
                A.i(f"v_cvt_pk_bf16_f32 {v(q+2)}, {v(a1)}, {v(a1+1)}")
                A.i(f"v_cvt_pk_bf16_f32 {v(q+3)}, {v(a1+2)}, {v(a1+3)}")
        A.i("s_waitcnt lgkmcnt(0)")
        A.nop(1)
        for Tp in range(2):
            for qt in range(3):
                for kt in range(3):
                    d = S + 4*(qt*3+kt)
                    c = "0" if Tp == 0 else v(d,4)
                    A.i(f"v_mfma_f32_16x16x32_bf16 {v(d,4)}, {v(KF+4*(kt*2+Tp),4)}, {v(QF+4*(Tp*3+qt),4)}, {c}")
        A.nop(8)
        for t in range(9):
            A.i(f"ds_write_b128 {v(self.vSx)}, {v(S+4*t,4)} offset:{t*1024}")
        A.i("s_waitcnt vmcnt(0) lgkmcnt(0)")
        A.i("s_barrier")
        P2 = self.FA[0]
        tmp = list(range(self.FA[0], self.FA[0]+16)) + list(range(self.FA[1], self.FA[1]+16)) + list(range(self.FB[0], self.FB[0]+4))
        assert self.FA[1] == self.FA[0]+16 and self.FB[0] == self.FA[1]+16
        for t in range(9):
            A.i(f"ds_read_b128 {v(P2+4*t,4)}, {v(self.vSx+1)} offset:{t*1024}")
        VF = KF
        vrd = [f"ds_read_b64_tr_b16 {v(VF + 6*dt + 2*kt, 2)}, {v(self.vVr+dt)} offset:{kt*4096}" for dt in range(4) for kt in range(3)]
        for r in vrd[:6]: A.i(r)
        A.i("s_waitcnt lgkmcnt(6)")
        for r in vrd[6:]: A.i(r)
        for t in range(36):
            A.i(f"v_add_f32 {v(S+t)}, {v(S+t)}, {v(P2+t)}")
        self.stamp()
        T = self.vT
        M = [T, T+1, T+2]; X = [T+3, T+4, T+5]
        def each(f):
            for qt in range(3): f(qt)
        sq = lambda qt, j: S + 12*qt + j
        each(lambda qt: A.i(f"v_max3_f32 {v(M[qt])}, {v(sq(qt,0))}, {v(sq(qt,1))}, {v(sq(qt,2))}"))
        for j in (3, 5, 7, 9):
            each(lambda qt: A.i(f"v_max3_f32 {v(M[qt])}, {v(M[qt])}, {v(sq(qt,j))}, {v(sq(qt,j+1))}"))
        each(lambda qt: A.i(f"v_max_f32 {v(M[qt])}, {v(M[qt])}, {v(sq(qt,11))}"))
        def xreduce(op):
            each(lambda qt: A.i(f"v_mov_b32 {v(X[qt])}, {v(M[qt])}"))
            A.nop(1)
            each(lambda qt: A.i(f"v_permlane16_swap_b32 {v(M[qt])}, {v(X[qt])}"))
            each(lambda qt: A.i(f"{op} {v(M[qt])}, {v(M[qt])}, {v(X[qt])}"))
            each(lambda qt: A.i(f"v_mov_b32 {v(X[qt])}, {v(M[qt])}"))
            A.nop(1)
            each(lambda qt: A.i(f"v_permlane32_swap_b32 {v(M[qt])}, {v(X[qt])}"))
            each(lambda qt: A.i(f"{op} {v(M[qt])}, {v(M[qt])}, {v(X[qt])}"))
        xreduce("v_max_f32")
        each(lambda qt: A.i(f"v_mul_f32 {v(M[qt])}, {s(self.sC2)}, {v(M[qt])}"))
        for j in range(12):
            each(lambda qt: A.i(f"v_fma_f32 {v(sq(qt,j))}, {v(sq(qt,j))}, {s(self.sC2)}, -{v(M[qt])}"))
        for j in range(12):
            each(lambda qt: A.i(f"v_exp_f32 {v(sq(qt,j))}, {v(sq(qt,j))}"))
        each(lambda qt: A.i(f"v_add_f32 {v(M[qt])}, {v(sq(qt,0))}, {v(sq(qt,1))}"))
        for j in range(2, 12):
            each(lambda qt: A.i(f"v_add_f32 {v(M[qt])}, {v(M[qt])}, {v(sq(qt,j))}"))
        xreduce("v_add_f32")
        each(lambda qt: A.i(f"v_rcp_f32 {v(M[qt])}, {v(M[qt])}"))
        A.nop(1)
        for j in range(12):
            each(lambda qt: A.i(f"v_mul_f32 {v(sq(qt,j))}, {v(sq(qt,j))}, {v(M[qt])}"))
        PF = QF
        for qt in range(3):
            for j in range(6):
                A.i(f"v_cvt_pk_bf16_f32 {v(PF+6*qt+j)}, {v(sq(qt,2*j))}, {v(sq(qt,2*j+1))}")
        A.i("s_waitcnt lgkmcnt(0)")
        A.nop(1)
        self.stamp()
        for dt in range(4):
            for qt in range(3):
                d = ACC + 4*(dt*3+qt)
                A.i(f"v_mfma_f32_16x16x32_bf16 {v(d,4)}, {v(VF+6*dt,4)}, {v(PF+6*qt,4)}, 0")
        for dt in range(4):
            for qt in range(3):
                d = ACC + 4*(dt*3+qt)
                A.i(f"v_mfma_f32_16x16x16_bf16 {v(d,4)}, {v(VF+6*dt+4,2)}, {v(PF+6*qt+4,2)}, {v(d,4)}")
        A.nop(8)
        OF = S
        for Tp in range(2):
            for qt in range(3):
                q = OF + 4*(Tp*3+qt)
                a0 = ACC + 4*((2*Tp)*3+qt); a1 = ACC + 4*((2*Tp+1)*3+qt)
                A.i(f"v_cvt_pk_bf16_f32 {v(q)}, {v(a0)}, {v(a0+1)}")
                A.i(f"v_cvt_pk_bf16_f32 {v(q+1)}, {v(a0+2)}, {v(a0+3)}")
                A.i(f"v_cvt_pk_bf16_f32 {v(q+2)}, {v(a1)}, {v(a1+1)}")
                A.i(f"v_cvt_pk_bf16_f32 {v(q+3)}, {v(a1+2)}, {v(a1+3)}")
        for Tp in range(2):
            for qt in range(3):
                q = OF + 4*(Tp*3+qt)
                off = (Tp*3+qt)*1024
                if off < 4096:
                    A.i(f"buffer_store_dwordx4 {v(q,4)}, {v(self.vO)}, {s(self.SWS,4)}, 0 offen offset:{off}")
                else:
                    A.i(f"s_mov_b32 s33, 4096")
                    A.i(f"buffer_store_dwordx4 {v(q,4)}, {v(self.vO)}, {s(self.SWS,4)}, s33 offen offset:{off-4096}")
        self.stamp()

    def write_stamps(self, base):
        if not self.stamps: return
        A = self.A
        A.i("s_waitcnt vmcnt(0) lgkmcnt(0)")
        A.i(f"s_memtime {s(self.sStamp + 2*self.nstamp, 2)}"); self.nstamp += 1
        A.i("s_waitcnt lgkmcnt(0)")
        for k in range(self.nstamp):
            A.i(f"v_mov_b32 {v(self.FA[0]+k)}, {s(self.sStamp+2*k)}")
        A.i(f"s_lshl_b32 s33, s2, 7")
        A.i(f"s_add_u32 s33, s33, {base}")
        A.i(f"v_mov_b32 {v(self.vT)}, s33")
        A.i("v_cmp_eq_u32 vcc, 0, v0")
        A.i("s_and_saveexec_b64 s[34:35], vcc")
        A.i("s_cbranch_execz L_k1_nostamp")
        for k in range(self.nstamp):
            A.i(f"buffer_store_dword {v(self.FA[0]+k)}, {v(self.vT)}, {s(self.SWS,4)}, 0 offen offset:{4*k}")
        A.label("L_k1_nostamp")

    def emit(self, name):
        A = self.A
        kernel_header(A, name)
        A.i("s_cmp_ge_u32 s2, 256")
        A.i("s_cbranch_scc1 L_k1_done")
        self.stamp()
        self.setup()
        self.gemm()
        self.attention()
        self.write_stamps(0x800000)
        A.label("L_k1_done")
        A.i("s_endpgm")
```

```python
from asmlib import *

class K2D:
    def __init__(self, A, stamps=False, depth=8, stagger=False, ntw='', nto=''):
        self.A = A; self.stamps = stamps; self.D = depth
        self.stagger = stagger; self.ntw = ntw; self.nto = nto; self.sOff = 26
        self.SWO, self.SWS, self.SOUT = 8, 12, 16
        self.sB, self.sJ, self.sWV = 20, 21, 22
        self.sM0, self.sOW, self.sOO = 23, 24, 25
        self.sStamp = 60; self.nstamp = 0
        R = RA(1, 256, 'v'); self.R = R
        self.vL = R.alloc('lane'); self.vT = R.alloc('tmp', 8)
        self.vW = R.alloc('wo', 4)
        self.vOo = R.alloc('o', 1)
        self.vA = R.alloc('a', 4)
        self.vR = R.alloc('red', 2)
        self.vOut = R.alloc('out', 1)
        self.FA = [R.alloc('fa0', 16, 4), R.alloc('fa1', 16, 4)]
        self.ACC = R.alloc('acc', 48, 4)
        self.FB = R.alloc('fb', 12*depth, 4)
    def stamp(self):
        if not self.stamps: return
        r = self.sStamp + 2*self.nstamp; self.nstamp += 1
        self.A.i(f"s_memtime {s(r,2)}")
    def setup(self):
        A = self.A; T = self.vT; L = self.vL
        A.i("s_load_dwordx4 s[4:7], s[0:1], 32")
        A.i("s_load_dwordx2 s[52:53], s[0:1], 56")
        A.i(f"v_and_b32 {v(L)}, 63, v0")
        A.i(f"v_lshrrev_b32 {v(T)}, 6, v0")
        A.i("s_and_b32 s33, s2, 7")
        A.i(f"v_readfirstlane_b32 {s(self.sWV)}, {v(T)}")
        A.i("s_lshr_b32 s34, s2, 3")
        A.i("s_and_b32 s35, s33, 1"); A.i("s_lshl_b32 s35, s35, 3"); A.i("s_and_b32 s36, s34, 7"); A.i(f"s_add_u32 {s(self.sB)}, s35, s36")
        A.i("s_lshr_b32 s35, s33, 1"); A.i("s_lshl_b32 s35, s35, 2"); A.i("s_lshr_b32 s36, s34, 3"); A.i(f"s_add_u32 {s(self.sJ)}, s35, s36")
        A.i(f"s_mul_i32 {s(self.sM0)}, {s(self.sWV)}, {self.D*4096}")
        if self.stagger:
            A.i(f"s_and_b32 s33, {s(self.sB)}, 7"); A.i("s_lshl_b32 s33, s33, 2")
            A.i(f"s_and_b32 s34, {s(self.sJ)}, 3"); A.i("s_mul_i32 s34, s34, 9"); A.i("s_add_u32 s33, s33, s34")
            A.i(f"s_and_b32 {s(self.sOff)}, s33, 31")
        A.i(f"v_lshrrev_b32 {v(T)}, 3, {v(L)}")
        A.i(f"v_lshlrev_b32 {v(T)}, 11, {v(T)}")
        A.i(f"v_lshrrev_b32 {v(T+1)}, 4, {v(L)}")
        A.i(f"v_lshlrev_b32 {v(T+1)}, 1, {v(T+1)}")
        A.i(f"v_and_b32 {v(T+2)}, 7, {v(L)}")
        A.i(f"v_xor_b32 {v(T+1)}, {v(T+1)}, {v(T+2)}")
        A.i(f"v_lshl_add_u32 {v(T)}, {v(T+1)}, 4, {v(T)}")
        A.i(f"s_lshl_b32 s33, {s(self.sJ)}, 7")
        A.i(f"s_lshl_b32 s34, {s(self.sWV)}, 21")
        A.i("s_add_u32 s33, s33, s34")
        A.i(f"v_add_u32 {v(T)}, s33, {v(T)}")
        for ii in range(4):
            A.i(f"v_add_u32 {v(self.vW+ii)}, {ii*8*2048}, {v(T)}")
        A.i(f"s_lshr_b32 s33, {s(self.sB)}, 1"); A.i("s_mul_i32 s33, s33, 786432")
        A.i(f"s_and_b32 s34, {s(self.sB)}, 1"); A.i("s_mul_i32 s34, s34, 12288"); A.i("s_add_u32 s33, s33, s34")
        A.i(f"s_mul_i32 s34, {s(self.sWV)}, 196608"); A.i("s_add_u32 s33, s33, s34")
        A.i(f"v_lshlrev_b32 {v(T+1)}, 4, {v(L)}")
        A.i(f"v_add_u32 {v(self.vOo)}, s33, {v(T+1)}")
        A.i("s_waitcnt lgkmcnt(0)")
        def srd(d, lo, size):
            A.i(f"s_mov_b32 {s(d)}, s{lo}"); A.i(f"s_mov_b32 {s(d+1)}, s{lo+1}")
            A.i(f"s_mov_b32 {s(d+2)}, {size}"); A.i(f"s_mov_b32 {s(d+3)}, 0x20000")
        srd(self.SWO, 4, 8388608); srd(self.SOUT, 6, 1572864); srd(self.SWS, 52, 0x10000000)
    def setup2(self):
        A = self.A; T = self.vT; L = self.vL
        A.i(f"v_lshrrev_b32 {v(T+1)}, 4, {v(L)}")
        A.i(f"v_bfe_u32 {v(T+2)}, {v(L)}, 2, 2")
        A.i(f"v_and_b32 {v(T+3)}, 3, {v(L)}")
        A.i(f"v_lshl_add_u32 {v(T+4)}, {v(T+1)}, 2, {v(T+2)}")
        A.i(f"v_lshrrev_b32 {v(T+5)}, 1, {v(T+4)}")
        A.i(f"v_and_b32 {v(T+5)}, 3, {v(T+5)}")
        A.i(f"v_lshlrev_b32 {v(T+5)}, 1, {v(T+5)}")
        A.i(f"v_lshrrev_b32 {v(T+6)}, 1, {v(T+3)}")
        A.i(f"v_xor_b32 {v(T+5)}, {v(T+5)}, {v(T+6)}")
        A.i(f"v_lshlrev_b32 {v(T+4)}, 7, {v(T+4)}")
        A.i(f"v_and_b32 {v(T+6)}, 1, {v(T+3)}")
        A.i(f"v_lshl_add_u32 {v(T+4)}, {v(T+6)}, 3, {v(T+4)}")
        A.i(f"v_add_u32 {v(T+4)}, {s(self.sM0)}, {v(T+4)}")
        for nt in range(4):
            A.i(f"v_xor_b32 {v(T+6)}, {2*nt}, {v(T+5)}")
            A.i(f"v_lshl_add_u32 {v(self.vA+nt)}, {v(T+6)}, 4, {v(T+4)}")
        A.i(f"v_lshlrev_b32 {v(self.vR)}, 4, {v(L)}")
        A.i(f"v_and_b32 {v(T)}, 15, {v(L)}")
        A.i(f"s_mul_i32 s33, {s(self.sB)}, 48")
        A.i(f"v_add_u32 {v(T)}, s33, {v(T)}")
        A.i(f"v_lshlrev_b32 {v(T)}, 11, {v(T)}")
        A.i(f"v_lshl_add_u32 {v(T)}, {v(T+1)}, 3, {v(T)}")
        A.i(f"s_lshl_b32 s33, {s(self.sJ)}, 7")
        A.i(f"s_lshl_b32 s34, {s(self.sWV)}, 5")
        A.i("s_add_u32 s33, s33, s34")
        A.i(f"v_add_u32 {v(self.vOut)}, s33, {v(T)}")
    def issue(self, st):
        D = self.D; slot = st % D
        out = []
        ow = st*32*2048
        oo = (st >> 2)*24576 + (st & 3)*3072
        if self.stagger:
            out.append((f"s_add_u32 s27, {s(self.sOff)}, {st}\n    s_and_b32 s27, s27, 31\n    s_lshl_b32 {s(self.sOW)}, s27, 16", None))
            out.append((f"s_lshr_b32 s28, s27, 2\n    s_mul_i32 s28, s28, 24576\n    s_and_b32 s27, s27, 3\n    s_mul_i32 s27, s27, 3072\n    s_add_u32 {s(self.sOO)}, s27, s28", None))
        else:
            out.append((f"s_mov_b32 {s(self.sOW)}, {ow}", None))
            out.append((f"s_mov_b32 {s(self.sOO)}, {oo}", None))
        for ii in range(4):
            out.append((f"s_add_u32 m0, {s(self.sM0)}, {slot*4096 + ii*1024}",
                        f"buffer_load_dwordx4 {v(self.vW+ii)}, {s(self.SWO,4)}, {s(self.sOW)} offen {self.ntw} lds"))
        for tt in range(3):
            out.append((None, f"buffer_load_dwordx4 {v(self.FB+12*slot+4*tt,4)}, {v(self.vOo)}, {s(self.SWS,4)}, {s(self.sOO)} offen offset:{tt*1024} {self.nto}"))
        return out
    def reads(self, st, setn):
        slot = st % self.D
        return [f"ds_read_b64_tr_b16 {v(self.FA[setn]+4*nt+2*sec,2)}, {v(self.vA+nt)} offset:{slot*4096 + sec*2048}" for nt in range(4) for sec in range(2)]
    def mfmas(self, st, setn, first):
        slot = st % self.D
        out = []
        for nt in range(4):
            for tt in range(3):
                a = self.ACC + 4*(nt*3+tt)
                c = "0" if first else v(a,4)
                out.append(f"v_mfma_f32_16x16x32_bf16 {v(a,4)}, {v(self.FA[setn]+4*nt,4)}, {v(self.FB+12*slot+4*tt,4)}, {c}")
        return out
    def main(self):
        A = self.A; D = self.D; NS = 32
        for st in range(D):
            for pre, ins in self.issue(st):
                if pre: A.i(pre)
                if pre and ins: A.i("s_nop 0")
                if ins: A.i(ins)
        self.setup2()
        self.stamp()
        A.i(f"s_waitcnt vmcnt({7*(D-1)})")
        for r in self.reads(0, 0): A.i(r)
        for st in range(NS):
            A.c(f"---- step {st}")
            setn = st & 1
            nxt = st + 1 < NS
            if nxt:
                last = min(st + D - 1, NS - 1)
                n = 7*(last - (st+1))
                A.i(f"s_waitcnt vmcnt({n}) lgkmcnt(0)")
                rd = self.reads(st+1, setn ^ 1)
            else:
                A.i("s_waitcnt lgkmcnt(0)")
                rd = []
            mf = self.mfmas(st, setn, st == 0)
            iss = self.issue(st + D) if st + D < NS else []
            dma = [x for x in iss if x[1] is None or ' lds' in x[1]]
            old = [x for x in iss if x[1] is not None and ' lds' not in x[1]]
            for k in range(12):
                if k < len(rd): A.i(rd[k])
                if dma:
                    pre, ins = dma.pop(0)
                    A.i(pre)
                    A.i(mf[k])
                    if ins: A.i(ins)
                else:
                    A.i(mf[k])
            assert not dma
            for pre, ins in old: A.i(ins)
        self.stamp()
    def reduce_store(self):
        A = self.A; T = self.vT; ACC = self.ACC
        A.i("s_barrier")
        A.nop(8)
        A.i(f"s_mov_b32 s33, 0")
        for w in range(4):
            A.i(f"s_cmp_eq_u32 {s(self.sWV)}, {w}")
            A.i(f"s_cbranch_scc1 L_k2_red{w}")
        for w in range(4):
            A.label(f"L_k2_red{w}")
            for nt in range(4):
                if nt == w: continue
                src = (w - nt - 1) & 3
                for tt in range(3):
                    A.i(f"ds_write_b128 {v(self.vR)}, {v(ACC+4*(nt*3+tt),4)} offset:{nt*9216 + src*3072 + tt*1024}")
            A.i("s_waitcnt lgkmcnt(0)")
            A.i("s_barrier")
            F = self.FB
            for src in range(3):
                for tt in range(3):
                    A.i(f"ds_read_b128 {v(F+4*(src*3+tt),4)}, {v(self.vR)} offset:{w*9216 + src*3072 + tt*1024}")
            A.i("s_waitcnt lgkmcnt(0)")
            for tt in range(3):
                a = ACC + 4*(w*3+tt)
                for i in range(4):
                    A.i(f"v_add_f32 {v(F+4*tt+i)}, {v(F+4*tt+i)}, {v(F+4*(3+tt)+i)}")
                    A.i(f"v_add_f32 {v(a+i)}, {v(a+i)}, {v(F+4*(6+tt)+i)}")
                for i in range(4):
                    A.i(f"v_add_f32 {v(a+i)}, {v(a+i)}, {v(F+4*tt+i)}")
                A.i(f"v_cvt_pk_bf16_f32 {v(T+2*tt)}, {v(a)}, {v(a+1)}")
                A.i(f"v_cvt_pk_bf16_f32 {v(T+2*tt+1)}, {v(a+2)}, {v(a+3)}")
            A.i("s_branch L_k2_st")
        A.label("L_k2_st")
        for tt in range(3):
            A.i(f"s_mov_b32 s33, {tt*16*2048}")
            A.i(f"buffer_store_dwordx2 {v(T+2*tt,2)}, {v(self.vOut)}, {s(self.SOUT,4)}, s33 offen")
        self.stamp()
    def write_stamps(self, base):
        if not self.stamps: return
        A = self.A
        A.i("s_waitcnt vmcnt(0) lgkmcnt(0)")
        A.i(f"s_memtime {s(self.sStamp + 2*self.nstamp, 2)}"); self.nstamp += 1
        A.i("s_waitcnt lgkmcnt(0)")
        for k in range(self.nstamp):
            A.i(f"v_mov_b32 {v(self.FA[0]+k)}, {s(self.sStamp+2*k)}")
        A.i(f"s_lshl_b32 s33, s2, 7")
        A.i(f"s_add_u32 s33, s33, {base}")
        A.i(f"v_mov_b32 {v(self.vR)}, s33")
        A.i("v_cmp_eq_u32 vcc, 0, v0")
        A.i("s_and_saveexec_b64 s[34:35], vcc")
        A.i("s_cbranch_execz L_k2_nostamp")
        for k in range(self.nstamp):
            A.i(f"buffer_store_dword {v(self.FA[0]+k)}, {v(self.vR)}, {s(self.SWS,4)}, 0 offen offset:{4*k}")
        A.label("L_k2_nostamp")
    def emit(self, name):
        A = self.A
        kernel_header(A, name)
        A.i("s_cmp_ge_u32 s2, 256")
        A.i("s_cbranch_scc1 L_k2_done")
        self.stamp()
        self.setup()
        self.main()
        self.reduce_store()
        self.write_stamps(0x900000)
        A.label("L_k2_done")
        A.i("s_endpgm")
```

```python
import sys
from asmlib import *
from k1 import K1
from k2 import K2D
HDR = open('standalone__mha_block_cached__near_ridge.s.ref').read().split('; Override')[0]
def gen(stamps=False, mapping='A', depth=8, stagger=False, nt=False):
    A = Asm()
    A(HDR.rstrip())
    A("; @launch kernel=mha_k1_kernel grid=(256,1,1) block=(256,1,1) lds=163840")
    A(f"; @launch kernel=mha_k2_kernel grid=(256,1,1) block=(256,1,1) lds={4*depth*4096 if 4*depth*4096 >= 36864 else 36864}")
    A('.amdgcn_target "amdgcn-amd-amdhsa--gfx950"\n.text')
    n = 'nt' if nt else ''
    k1 = K1(A, stamps, mapping, stagger=stagger, ntw=n, ntkv=n); k1.emit("mha_k1_kernel")
    k2 = K2D(A, stamps, depth, stagger=stagger, ntw=n); k2.emit("mha_k2_kernel")
    kernel_desc(A, "mha_k1_kernel", 256, 256)
    kernel_desc(A, "mha_k2_kernel", 256, 256)
    return A.text()
if __name__ == '__main__':
    out = sys.argv[1]
    stamps = 'stamps' in sys.argv
    t = gen(stamps=stamps, stagger='stagger' in sys.argv, nt='nt' in sys.argv)
    open(out, 'w').write(t)
    from hazcheck import check
    e = check(t)
    for q in e[:40]: print(q)
    print(len(e), "hazard findings;", len(t), "bytes")
```

```python
import sys
out, mult, argoff = sys.argv[1], int(sys.argv[2]), int(sys.argv[3])
s = open('v1.s').read()
s = s.replace("; @launch kernel=mha_k1_kernel", "; @launch kernel=mha_probe_kernel grid=(1,1,1) block=(64,1,1) lds=0\n; @launch kernel=mha_k1_kernel", 1)
N = 32
body = []
a = body.append
a('''
.globl mha_probe_kernel
.p2align 8
.type mha_probe_kernel,@function
mha_probe_kernel:
    s_cmp_ge_u32 s2, 1
    s_cbranch_scc1 L_pr_done
    s_load_dwordx2 s[4:5], s[0:1], %d
    s_load_dwordx2 s[6:7], s[0:1], 56
    s_waitcnt lgkmcnt(0)
    s_mov_b32 s8, s4
    s_mov_b32 s9, s5
    s_mov_b32 s10, 6291456
    s_mov_b32 s11, 0x20000
    s_mov_b32 s12, s6
    s_mov_b32 s13, s7
    s_mov_b32 s14, 0x10000000
    s_mov_b32 s15, 0x20000
    s_mov_b64 exec, 1
    v_mov_b32 v1, 4096
    buffer_load_dword v2, v1, s[8:11], 0 offen
    s_waitcnt vmcnt(0)
    s_memtime s[20:21]
    s_waitcnt lgkmcnt(0)
''' % argoff)
for i in range(N):
    a(f"    v_and_b32 v3, 0, v2\n    v_add_u32 v3, {65536 + i*190464}, v3\n    buffer_load_dword v2, v3, s[8:11], 0 offen\n    s_waitcnt vmcnt(0)\n")
a('''    s_memtime s[22:23]
    s_waitcnt lgkmcnt(0)
    s_sub_u32 s24, s22, s20
    v_mov_b32 v4, s24
    v_mov_b32 v5, 0xA00000
    buffer_store_dword v4, v5, s[12:15], 0 offen
    s_mul_i32 s25, s24, %d
    s_min_u32 s25, s25, 2000000
L_pr_spin:
    s_memtime s[26:27]
    s_waitcnt lgkmcnt(0)
    s_sub_u32 s28, s26, s22
    s_cmp_lt_u32 s28, s25
    s_cbranch_scc1 L_pr_spin
    s_waitcnt vmcnt(0)
L_pr_done:
    s_endpgm
''' % mult)
s = s.replace('\n.globl mha_k1_kernel', ''.join(body) + '\n.globl mha_k1_kernel', 1)
s += '''
.section .rodata,"a"
.p2align 6
.amdhsa_kernel mha_probe_kernel
  .amdhsa_next_free_vgpr 32
  .amdhsa_next_free_sgpr 102
  .amdhsa_accum_offset 32
  .amdhsa_group_segment_fixed_size 0
  .amdhsa_kernarg_size 64
  .amdhsa_user_sgpr_count 2
  .amdhsa_user_sgpr_kernarg_segment_ptr 1
  .amdhsa_system_sgpr_workgroup_id_x 1
.end_amdhsa_kernel
'''
open(out, 'w').write(s)
```
